```python
import torch

def _softmax(x, axis=-1):
    return torch.softmax(x, dim=axis)

def _gelu(x):
    return torch.nn.functional.gelu(x, approximate='tanh')

def _silu(x):
    return torch.nn.functional.silu(x)

def _sigmoid(x):
    return torch.sigmoid(x)

def _layernorm(x, axis=-1, eps=1e-05):
    m = x.mean(dim=axis, keepdim=True)
    v = x.var(dim=axis, keepdim=True, unbiased=False)
    return (x - m) / torch.sqrt(v + eps)

def _scatter_add(tgt, idx, src, axis=0):
    return tgt.clone().index_add_(axis, idx, src)

def _segment_sum(src, seg, n):
    out = torch.zeros((n,) + src.shape[1:], dtype=src.dtype)
    return out.index_add_(0, seg, src)

def _pad(x, pw):
    flat = tuple((v for pair in reversed(pw) for v in pair))
    return torch.nn.functional.pad(x, flat)
kernel_name = 'adaLN_cond__gqa_block_cached__dense_activation_relu__prompt'

def setup_inputs():

    _w = lambda a: (lambda t: t.to(torch.bfloat16) if t.is_floating_point() else t)(torch.as_tensor(a))

    def _A_setup():
        B, Sq, D = (1, 2048, 448)
        Hq, Hkv, Sk, Dh = (16, 8, 2048, 256)
        assert Hq % Hkv == 0, (Hq, Hkv)
        return {'x': _w((lambda *s: torch.randn(*s, dtype=torch.bfloat16) * 0.1)(B, Sq, D)), 'k_cache': _w((lambda *s: torch.randn(*s, dtype=torch.bfloat16) * 0.8)(B, Hkv, Sk, Dh)), 'v_cache': _w((lambda *s: torch.randn(*s, dtype=torch.bfloat16) * 1.6)(B, Hkv, Sk, Dh)), 'wq': _w((lambda *s: torch.randn(*s, dtype=torch.bfloat16) * 0.8)(D, Hq * Dh) * D ** (-0.5)), 'wo': _w((lambda *s: torch.randn(*s, dtype=torch.bfloat16) * 1.6)(Hq * Dh, D) * (Hq * Dh) ** (-0.5))}
    _A_in = _A_setup()

    def _B_setup():
        B, S, D, Dff = (1, 2048, 448, 1792)
        return {'x': _w((lambda *s: torch.randn(*s, dtype=torch.bfloat16) * 0.1)(B, S, D)), 'w1': _w((lambda *s: torch.randn(*s, dtype=torch.bfloat16) * 0.2)(D, Dff)), 'w2': _w((lambda *s: torch.randn(*s, dtype=torch.bfloat16) * 0.2)(Dff, D))}
    _B_in = _B_setup()
    return {'A_x': _A_in['x'], 'A_k_cache': _A_in['k_cache'], 'A_v_cache': _A_in['v_cache'], 'A_wq': _A_in['wq'], 'A_wo': _A_in['wo'], 'B_x': _B_in['x'], 'B_w1': _B_in['w1'], 'B_w2': _B_in['w2'], 'c': _w((lambda *s: torch.randn(*s, dtype=torch.bfloat16) * 0.8)(1, 448) * 8.0), 'w_mod': _w((lambda *s: torch.randn(*s, dtype=torch.bfloat16) * 0.8)(448, 6 * 448) * 448 ** (-0.5) * 8.0)}

def reference(A_x, A_k_cache, A_v_cache, A_wq, A_wo, B_x, B_w1, B_w2, c, w_mod):

    def _A_ref(x, k_cache, v_cache, wq, wo):
        B, Sq, D = x.shape
        Hq, Dh = (16, 256)
        Hkv = k_cache.shape[1]
        rep = Hq // Hkv
        q = (lambda x, *d: x.permute(*d))((x @ wq).reshape(B, Sq, Hq, Dh), 0, 2, 1, 3)
        k = (lambda x, n, axis: torch.repeat_interleave(x, n, dim=axis))(k_cache, rep, axis=1)
        v = (lambda x, n, axis: torch.repeat_interleave(x, n, dim=axis))(v_cache, rep, axis=1)
        scores = torch.einsum('bhqd,bhkd->bhqk', q, k) * Dh ** (-0.5)
        p = _softmax(scores, axis=-1)
        o = torch.einsum('bhqk,bhkd->bhqd', p, v)
        return (lambda x, *d: x.permute(*d))(o, 0, 2, 1, 3).reshape(B, Sq, Hq * Dh) @ wo

    def _B_ref(x, w1, w2):
        h = torch.einsum('bsd,df->bsf', x, w1)
        zero = torch.zeros_like(h)
        h = torch.maximum(h, zero)
        return torch.einsum('bsf,fd->bsd', h, w2)
    x = A_x
    mod = (_silu(c) @ w_mod).reshape(c.shape[0], 6, 1, -1)
    sa, ca, ga, sb, cb, gb = (mod[:, 0].clone(), mod[:, 1].clone(), mod[:, 2].clone(), mod[:, 3].clone(), mod[:, 4].clone(), mod[:, 5].clone())
    h = _layernorm(x, axis=-1) * (1 + ca) + sa
    x = x + ga * _A_ref(h, A_k_cache, A_v_cache, A_wq, A_wo)
    h = _layernorm(x, axis=-1) * (1 + cb) + sb
    x = x + gb * _B_ref(h, B_w1, B_w2)
    return x
```

```python
import re

NAME = 'adaLN_cond__gqa_block_cached__dense_activation_relu__prompt'

def vr(i, n=1):
    return f'v{i}' if n == 1 else f'v[{i}:{i+n-1}]'
def ar(i, n=1):
    return f'a{i}' if n == 1 else f'a[{i}:{i+n-1}]'
def sr(i, n=1):
    return f's{i}' if n == 1 else f's[{i}:{i+n-1}]'

_REG = re.compile(r'^(-|abs\()?\s*([vas])(?:(\d+)|\[(\d+):(\d+)\])\)?$')

def parse_reg(tok):
    tok = tok.strip()
    if tok in ('vcc', 'exec', 'm0', 'scc'):
        return [(tok, 0)]
    m = _REG.match(tok)
    if not m: return []
    k = m.group(2)
    if m.group(3) is not None:
        return [(k, int(m.group(3)))]
    return [(k, i) for i in range(int(m.group(4)), int(m.group(5)) + 1)]

class Ins:
    __slots__ = ('text', 'op', 'dst', 'src', 'kind', 'ops')
    def __init__(self, text):
        self.text = text
        t = text.split(';')[0].strip()
        parts = t.split(None, 1)
        self.op = parts[0]
        rest = parts[1] if len(parts) > 1 else ''
        ops = [o.strip() for o in rest.split(',')] if rest else []
        clean = []
        for o in ops:
            toks = o.split()
            clean.append(toks[0] if toks else '')
        self.ops = clean
        op = self.op
        R = [parse_reg(o) for o in clean]
        flat = lambda l: [x for y in l for x in y]
        dst, src = [], []
        if op.startswith('v_mfma'):
            self.kind = 'mfma'; dst = R[0]; src = flat(R[1:])
        elif op.startswith('ds_read') or op.startswith('ds_bpermute') or op.startswith('ds_swizzle'):
            self.kind = 'ds'; dst = R[0]; src = flat(R[1:])
        elif op.startswith('ds_write'):
            self.kind = 'ds'; src = flat(R)
        elif op.startswith('buffer_load') or op.startswith('global_load'):
            self.kind = 'vmem'
            if ' lds' in t:
                src = flat(R) + [('m0', 0)]
            else:
                dst = R[0]; src = flat(R[1:])
        elif op.startswith('buffer_store') or op.startswith('global_store'):
            self.kind = 'vmem'; src = flat(R)
        elif op.startswith('buffer_atomic') or op.startswith('global_atomic'):
            self.kind = 'vmem'; src = flat(R)
            if ' sc0' in t: dst = R[0]
        elif op.startswith('buffer_') :
            self.kind = 'vmem'
        elif op.startswith('v_cmp'):
            self.kind = 'valu'; dst = R[0]; src = flat(R[1:])
        elif op.startswith('v_permlane') :
            self.kind = 'valu'; dst = R[0] + R[1]; src = R[0] + R[1]
        elif op.startswith('v_readfirstlane') or op.startswith('v_readlane'):
            self.kind = 'valu'; dst = R[0]; src = flat(R[1:])
        elif op.startswith('v_'):
            self.kind = 'valu'; dst = R[0]; src = flat(R[1:])
            if op.startswith('v_fmac') or op.startswith('v_dot2c') or op.startswith('v_mac') or 'dpp' in op or 'dpp' in t or 'row_' in t:
                src = src + R[0]
            if op.startswith('v_cndmask') and len(clean) == 3: src = src + [('vcc', 0)]
            if op.startswith('v_add_co') or op.startswith('v_addc_co') or op.startswith('v_sub_co'):
                dst = R[0] + R[1]; src = flat(R[2:])
        elif op.startswith('s_waitcnt') or op in ('s_barrier', 's_nop', 's_endpgm', 's_setprio', 's_sleep', 's_branch') or op.startswith('s_cbranch'):
            self.kind = 'sctl'
        elif op.startswith('s_load') or op.startswith('s_memtime') or op.startswith('s_memrealtime'):
            self.kind = 'smem'; dst = R[0]; src = flat(R[1:])
        elif op.startswith('s_cmp'):
            self.kind = 'salu'; src = flat(R)
        elif op.startswith('s_'):
            self.kind = 'salu'; dst = R[0]; src = flat(R[1:])
        else:
            raise ValueError('unknown op ' + text)
        self.dst = dst; self.src = src

TRANS = ('v_exp_f32', 'v_log_f32', 'v_rcp_f32', 'v_rsq_f32', 'v_sqrt_f32', 'v_sin_f32', 'v_cos_f32')

def states(ins):
    if ins.op == 's_nop':
        return int(ins.ops[0], 0) + 1
    return 1

def mfma_passes(op):
    if '32x32x16' in op: return 8
    if '16x16x32' in op: return 4
    raise ValueError(op)

def check_hazards(seq, where=''):
    probs = []
    n = len(seq)
    for i, c in enumerate(seq):
        if c.kind == 'sctl': continue
        dist = 0
        j = i - 1
        csrc = set(c.src); cdst = set(c.dst)
        while j >= 0 and dist < 20:
            p = seq[j]
            pd = set(p.dst)
            need = 0; why = ''
            if p.kind == 'mfma':
                ps = mfma_passes(p.op)
                if c.kind == 'mfma':
                    cA = set(parse_reg(c.ops[1])) | set(parse_reg(c.ops[2]))
                    cC = set(parse_reg(c.ops[3]))
                    if pd & cA: need = {4: 8, 8: 12}[ps]; why = 'mfma D->A/B'
                    elif pd & cC and (pd != cC): need = {4: 6, 8: 10}[ps]; why = 'mfma D->C overlap'
                    elif pd & cdst and not (pd == cdst and pd == cC) and pd != cdst: need = {4: 6, 8: 10}[ps]; why = 'mfma D/D partial'
                elif c.kind in ('valu', 'ds', 'vmem'):
                    if pd & (csrc | cdst): need = {4: 8, 8: 12}[ps]; why = 'mfma D->valu/mem'
                    if c.kind == 'valu':
                        pC = set(parse_reg(p.ops[3]))
                        if pC & cdst: need = max(need, {4: 3, 8: 7}[ps]); why = why or 'mfma C WAR'
            elif p.kind == 'valu':
                pv = {r for r in pd if r[0] in 'va'}
                psg = {r for r in pd if r[0] in ('s', 'vcc')}
                if c.kind == 'mfma' and pv & csrc: need = 2; why = 'valu->mfma'
                if c.kind == 'valu':
                    if p.op.replace('_e32', '').replace('_e64', '') in TRANS and pv & csrc and c.op not in TRANS: need = max(need, 1); why = 'trans->valu'
                    if p.op.replace('_e32', '').replace('_e64', '') in TRANS and pv & csrc and c.op in TRANS: need = max(need, 1); why = 'trans->trans(pad)'
                    if c.op.startswith('v_permlane') and pv & csrc: need = max(need, 2); why = 'valu->permlane'
                    if (c.op.startswith('v_readfirstlane') or c.op.startswith('v_readlane')) and pv & csrc: need = max(need, 1); why = 'valu->readlane'
                    if ('row_' in c.text or 'quad_perm' in c.text) and pv & csrc: need = max(need, 2); why = 'valu->dpp'
                    if psg & csrc: need = max(need, 2); why = 'valu sgpr->valu'
                if c.kind == 'vmem' and {r for r in psg if r[0] == 's'} & csrc: need = max(need, 5); why = 'valu sgpr->vmem'
                if c.kind == 'salu' and psg & csrc: need = max(need, 1); why = 'valu sgpr->salu(pad)'
            elif p.kind == 'salu':
                if ('m0', 0) in pd and c.kind == 'vmem' and ('m0', 0) in csrc: need = 1; why = 'm0->dma'
            elif p.kind == 'vmem':
                if ('store' in p.op) and ('x4' in p.op or 'x3' in p.op) and c.kind == 'valu':
                    data = set(parse_reg(p.ops[0])) if p.op.startswith('buffer') else set(parse_reg(p.ops[1]))
                    if data & cdst: need = 2; why = 'store data WAR'
            if need > dist:
                probs.append(f'{where} hazard {why}: need {need} have {dist}: [{p.text}] -> [{c.text}]')
            dist += states(p)
            j -= 1
    return probs

def check_waits(seq, where=''):
    probs = []
    lg = []
    vm = []
    for c in seq:
        if c.op == 's_waitcnt':
            m = re.search(r'lgkmcnt\((\d+)\)', c.text)
            if m:
                k = int(m.group(1))
                while len(lg) > k: lg.pop(0)
            m = re.search(r'vmcnt\((\d+)\)', c.text)
            if m:
                k = int(m.group(1))
                while len(vm) > k: vm.pop(0)
            continue
        touched = set(c.src) | set(c.dst)
        for q, nm in ((lg, 'lgkm'), (vm, 'vm')):
            for d in q:
                if d & touched:
                    probs.append(f'{where} unwaited {nm} result used by [{c.text}]')
                    break
        if c.kind == 'ds': lg.append(set(c.dst))
        elif c.kind == 'smem': lg.append(set(c.dst))
        elif c.kind == 'vmem': vm.append(set(c.dst))
    return probs

class Asm:
    def __init__(self):
        self.items = []
    def __call__(self, s):
        for l in s.strip('\n').split('\n'):
            l = l.strip()
            if not l: continue
            if l.startswith(';'):
                self.items.append(l); continue
            if l.endswith(':'):
                self.items.append(l); continue
            self.items.append(Ins(l))
    def label(self, s): self.items.append(s + ':')
    def comment(self, s): self.items.append('; ' + s)
    def extend(self, other): self.items.extend(other.items)
    def ins(self): return [x for x in self.items if isinstance(x, Ins)]
    def text(self):
        out = []
        for x in self.items:
            if isinstance(x, Ins): out.append('    ' + x.text)
            else: out.append(x)
        return '\n'.join(out) + '\n'
    def mark(self): return len(self.items)
    def since(self, m): return [x for x in self.items[m:] if isinstance(x, Ins)]

def kernel_text(name, body, vgpr, sgpr, accum):
    return f'''.text
.globl {name}
.p2align 8
.type {name},@function
{name}:
{body}.section .rodata,"a"
.p2align 6
.amdhsa_kernel {name}
  .amdhsa_next_free_vgpr {vgpr}
  .amdhsa_next_free_sgpr {sgpr}
  .amdhsa_accum_offset {accum}
  .amdhsa_group_segment_fixed_size 0
  .amdhsa_kernarg_size 104
  .amdhsa_user_sgpr_count 2
  .amdhsa_user_sgpr_kernarg_segment_ptr 1
  .amdhsa_system_sgpr_workgroup_id_x 1
.end_amdhsa_kernel
'''

def header():
    return open('cdna_kernels/%s.s.ref' % NAME).read().split('; Override launch geometry')[0]

def file_text(launches, kernels):
    s = header()
    for (k, g, b, lds) in launches:
        s += f'; @launch kernel={k} grid=({g},1,1) block=({b},1,1) lds={lds}\n'
    s += '.amdgcn_target "amdgcn-amd-amdhsa--gfx950"\n'
    s += ''.join(kernels)
    return s

def srd(a, dst, lo, nbytes):
    a(f's_mov_b32 s{dst}, s{lo}')
    a(f's_and_b32 s{dst+1}, s{lo+1}, 0xffff')
    a(f's_mov_b32 s{dst+2}, {nbytes}')
    a(f's_mov_b32 s{dst+3}, 0x00020000')

class State:
    def __init__(self):
        self.lg = []
        self.vm = []
    def copy(self):
        s = State(); s.lg = list(self.lg); s.vm = list(self.vm); return s
    def sig(self):
        return (tuple(tuple(sorted(d)) for d in self.lg), tuple((tuple(sorted(d)), t) for d, t in self.vm))

def resolve(items, st):
    waits = {}
    for idx, c in enumerate(items):
        if isinstance(c, str): continue
        if isinstance(c, tuple):
            if c[0] == 'waitvm':
                tags = c[1] if isinstance(c[1], (list, tuple, set)) else [c[1]]
                last = -1
                for i, (d, t) in enumerate(st.vm):
                    if t in tags: last = i
                n = len(st.vm) - 1 - last if last >= 0 else None
                if n is not None:
                    n = min(n, 63)
                    waits.setdefault(idx, [None, None])[1] = n
                    del st.vm[:len(st.vm) - n]
                else:
                    waits.setdefault(idx, [None, None])
            continue
        if c.op == 's_waitcnt':
            m = re.search(r'lgkmcnt\((\d+)\)', c.text)
            if m:
                k = int(m.group(1));
                if len(st.lg) > k: del st.lg[:len(st.lg) - k]
            m = re.search(r'vmcnt\((\d+)\)', c.text)
            if m:
                k = int(m.group(1))
                if len(st.vm) > k: del st.vm[:len(st.vm) - k]
            continue
        touched = set(c.src) | set(c.dst)
        if touched:
            last = -1
            for i, d in enumerate(st.lg):
                if d & touched: last = i
            if last >= 0:
                n = min(len(st.lg) - 1 - last, 15)
                waits.setdefault(idx, [None, None])[0] = n
                del st.lg[:len(st.lg) - n]
            last = -1
            for i, (d, t) in enumerate(st.vm):
                if d & touched: last = i
            if last >= 0:
                n = min(len(st.vm) - 1 - last, 63)
                waits.setdefault(idx, [None, None])[1] = n
                del st.vm[:len(st.vm) - n]
        if c.kind in ('ds', 'smem'):
            st.lg.append(frozenset(c.dst))
            if c.kind == 'smem' : pass
        elif c.kind == 'vmem':
            st.vm.append((frozenset(c.dst), getattr(c, 'tag', None)))
    return waits

def merge_waits(w1, w2):
    out = {}
    for k in set(w1) | set(w2):
        a = w1.get(k, [None, None]); b = w2.get(k, [None, None])
        out[k] = [x if y is None else (y if x is None else min(x, y)) for x, y in zip(a, b)]
    return out

def apply_waits(items, waits):
    out = []
    for idx, c in enumerate(items):
        w = waits.get(idx)
        if w and (w[0] is not None or w[1] is not None):
            s = 's_waitcnt'
            if w[1] is not None: s += f' vmcnt({w[1]})'
            if w[0] is not None: s += f' lgkmcnt({w[0]})'
            out.append(Ins(s))
        if not isinstance(c, tuple): out.append(c)
    return out

def resolve_linear(items, st):
    return apply_waits(items, resolve(items, st))

def resolve_loop(items, st):
    s1 = st.copy(); w1 = resolve(items, s1)
    s2 = s1.copy(); w2 = resolve(items, s2)
    s3 = s2.copy(); w3 = resolve(items, s3)
    assert s2.sig() == s3.sig(), 'loop state not stable'
    w = merge_waits(merge_waits(w1, w2), w3)
    st.lg = s3.lg; st.vm = s3.vm
    return apply_waits(items, w)

class TIns(Ins):
    __slots__ = ('tag',)
    def __init__(self, text, tag):
        super().__init__(text); self.tag = tag

class Seg:
    def __init__(self, n):
        self.n = n; self.mf = [None] * n
        self.pre = [[] for _ in range(n)]; self.post = [[] for _ in range(n)]
        self.cost = [0] * n
    def put(self, q, item, cost=4):
        if isinstance(item, str): item = Ins(item)
        self.post[q].append(item); self.cost[q] += cost
    def items(self):
        out = []
        for q in range(self.n):
            out += self.pre[q]
            if self.mf[q] is not None: out.append(Ins(self.mf[q]) if isinstance(self.mf[q], str) else self.mf[q])
            out += self.post[q]
        return out
```

```python
from asmlib import *
WS_MOD = 0
LOG2E = 0x3fb8aa3b

def gen_k1():
    a = Asm()
    a('s_cmp_ge_u32 s2, 42')
    a('s_cbranch_scc1 K1_end')
    a('s_load_dwordx2 s[4:5], s[0:1], 64')
    a('s_load_dwordx2 s[6:7], s[0:1], 72')
    a('s_load_dwordx2 s[8:9], s[0:1], 96')
    a('v_lshrrev_b32 v1, 3, v0')
    a('v_and_b32 v2, 7, v0')
    a('v_mul_u32_u24 v3, 5376, v1')
    a('v_lshl_add_u32 v3, v2, 4, v3')
    a('v_lshlrev_b32 v4, 1, v1')
    a('s_lshl_b32 s3, s2, 7')
    a('s_waitcnt lgkmcnt(0)')
    srd(a, 12, 4, 896)
    srd(a, 16, 6, 448 * 5376)
    srd(a, 20, 8, 10752)
    for t in range(14):
        a(f'buffer_load_ushort v{100+t}, v4, s[12:15], 0 offen offset:{t*64}')
    for t in range(14):
        a(f'buffer_load_dwordx4 {vr(16+4*t,4)}, v3, s[16:19], s3 offen')
        if t < 13: a('s_add_u32 s3, s3, 172032')
    for e in range(8): a(f'v_mov_b32 v{8+e}, 0')
    a(f's_mov_b32 s24, {LOG2E}')
    a('s_waitcnt vmcnt(14)')
    for t in range(14):
        x = 100 + t
        a(f'v_lshlrev_b32 v{x}, 16, v{x}')
    for t in range(14):
        x = 100 + t; y = 120 + t
        a(f'v_mul_f32 v{y}, s24, v{x}')
    for t in range(14):
        y = 120 + t
        a(f'v_exp_f32 v{y}, -v{y}')
    for t in range(14):
        y = 120 + t
        a(f'v_add_f32 v{y}, 1.0, v{y}')
    for t in range(14):
        y = 120 + t
        a(f'v_rcp_f32 v{y}, v{y}')
    for t in range(14):
        x = 100 + t; y = 120 + t
        a(f'v_mul_f32 v{y}, v{x}, v{y}')
    for t in range(14):
        y = 120 + t
        a(f'v_cvt_pk_bf16_f32 v{y}, 0, v{y}')
    for t in range(14):
        a(f's_waitcnt vmcnt({13-t})')
        for d in range(4):
            w = 16 + 4*t + d
            a(f'v_lshlrev_b32 v5, 16, v{w}')
            a(f'v_and_b32 v6, 0xffff0000, v{w}')
            a(f'v_fmac_f32 v{8+2*d}, v{120+t}, v5')
            a(f'v_fmac_f32 v{9+2*d}, v{120+t}, v6')
    a('v_lshlrev_b32 v5, 8, v1')
    a('v_lshl_add_u32 v5, v2, 5, v5')
    a('ds_write_b128 v5, v[8:11]')
    a('ds_write_b128 v5, v[12:15] offset:16')
    a('v_lshrrev_b32 v6, 6, v0')
    a('s_waitcnt lgkmcnt(0)')
    a('v_readfirstlane_b32 s25, v6')
    a('s_barrier')
    a('s_cmp_lg_u32 s25, 0')
    a('s_cbranch_scc1 K1_end')
    a('v_lshlrev_b32 v5, 2, v0')
    for r in range(32):
        a(f'ds_read_b32 v{16+r}, v5 offset:{r*256}')
        if r == 14: pass
    a('s_waitcnt lgkmcnt(0)')
    for st in (16, 8, 4, 2, 1):
        for r in range(st):
            a(f'v_add_f32 v{16+r}, v{16+r}, v{16+r+st}')
    a('v_cvt_pk_bf16_f32 v16, 0, v16')
    a('s_lshl_b32 s26, s2, 6')
    a('v_add_u32 v7, s26, v0')
    a('v_add_f32 v17, 1.0, v16')
    a('v_cvt_pk_bf16_f32 v17, 0, v17')
    a('v_subrev_u32 v18, 448, v7')
    a('v_subrev_u32 v19, 1792, v7')
    a('v_min_u32 v18, v18, v19')
    a('v_cmp_gt_u32 vcc, 448, v18')
    a('v_lshlrev_b32 v7, 2, v7')
    a('s_nop 0')
    a('v_cndmask_b32 v16, v16, v17, vcc')
    a('buffer_store_dword v16, v7, s[20:23], 0 offen')
    a.label('K1_end')
    a('s_endpgm')
    probs = check_hazards(a.ins(), 'k1') + check_waits(a.ins(), 'k1')
    for p in probs: print(p)
    return kernel_text('k1_mod_kernel', a.text(), vgpr=136, sgpr=32, accum=136), ('k1_mod_kernel', 42, 256, 8192)
```

```python
from asmlib import *
import math, struct

def f2u(x): return struct.unpack('<I', struct.pack('<f', x))[0]

WS_MOD = 0
WS_PART = 0x100000
WS_DBG = 0x2000000
CSCALE = math.log2(math.e) / 16.0
U0 = 72.0
THR = 0x71800000

KBUF = [0, 33792]
VBUF = [67584, 102400]
WQSLOT = [33792, 67584, 0]
HBUF = 101376
QBUF = 67584
XAREA = 67584
STAT = 137216
WOSLOT = [0, 32768, 67584, 100352]
LDS_BYTES = 163840

sX, sK, sV, sWQ, sWO, sMOD, sPART, sDBG = 16, 20, 24, 28, 32, 36, 40, 44
sW, sA, sKG, sG, sRB = 48, 49, 50, 51, 52
sT0, sT1, sT2, sT3 = 53, 54, 55, 56
sKoff, sKoff2, sVoff, sVoff2 = 57, 58, 59, 60
sKdst, sVdst = 61, 62
sCnt, sThr, sMask, sSite = 63, 64, 65, 66
sWqOff, sWoOff = 67, 68
sTS = 70

vLane, vC, vG4, vR, vCq = 1, 2, 3, 4, 5
vKrd, vVrdE, vVrdO, vDmaK, vDmaV = 8, 9, 10, 11, 12
vT0, vT1, vT2 = 13, 14, 15
vL, vLt, vPt, vFr, vNegm, vP, vS, vO = 16, 20, 24, 32, 48, 64, 96, 128
def S_(kt, lr): return vS + (kt * 4 + lr) * 4
def P_(b, lr): return vP + (b * 4 + lr) * 4
def NEGM(lr): return vNegm + lr * 4
def OK_(dt, lr): return vO + (dt * 2 + lr) * 4
def OG_(dt, lr): return (dt * 2 + (lr - 2)) * 4
def Q_(lr, ds): return 128 + (lr * 8 + ds) * 4
def FR(f): return vFr + (f & 3) * 4
MF = 'v_mfma_f32_16x16x32_bf16'

def oreg(dt, lr):
    return vr(OK_(dt, lr), 4) if lr < 2 else ar(OG_(dt, lr), 4)

def allreduce_g4(a, v, t, op):
    a(f'v_mov_b32 v{t}, v{v}')
    a('s_nop 1')
    a(f'v_permlane16_swap_b32 v{v}, v{t}')
    a('s_nop 1')
    a(f'{op} v{v}, v{v}, v{t}')
    a(f'v_mov_b32 v{t}, v{v}')
    a('s_nop 1')
    a(f'v_permlane32_swap_b32 v{v}, v{t}')
    a('s_nop 1')
    a(f'{op} v{v}, v{v}, v{t}')

def gen_k2(dbg=None, stop=None):
    a = Asm()
    st = State()
    def flush(items):
        a.items.extend(resolve_linear(items, st))
    def L(text):
        x = Asm(); x(text); return x.items
    pro = Asm()
    p = pro
    p('s_cmp_ge_u32 s2, 256')
    p('s_cbranch_scc1 K2_end')
    p('s_load_dwordx4 s[4:7], s[0:1], 0')
    p('s_load_dwordx4 s[8:11], s[0:1], 16')
    p('s_load_dwordx2 s[12:13], s[0:1], 32')
    p('s_load_dwordx2 s[14:15], s[0:1], 96')
    p(f'v_and_b32 v{vLane}, 63, v0')
    p(f'v_lshrrev_b32 v{vT0}, 6, v0')
    p(f'v_and_b32 v{vC}, 15, v0')
    p(f'v_readfirstlane_b32 s{sW}, v{vT0}')
    p(f'v_lshrrev_b32 v{vG4}, 4, v{vLane}')
    p(f'v_bfe_u32 v{vR}, v0, 2, 2')
    p(f'v_and_b32 v{vCq}, 3, v0')
    p(f's_and_b32 s{sG}, s2, 7')
    p(f's_lshr_b32 s{sRB}, s2, 3')
    p(f's_and_b32 s{sA}, s{sW}, 1')
    p(f's_lshr_b32 s{sKG}, s{sW}, 1')
    p(f's_mov_b32 s{sMask}, 0xffff0000')
    p(f's_mov_b32 s{sThr}, {THR}')
    p('s_waitcnt lgkmcnt(0)')
    srd(p, sX, 4, 1835008)
    p(f's_lshl_b32 s{sT0}, s{sG}, 20')
    p(f's_add_u32 s6, s6, s{sT0}'); p('s_addc_u32 s7, s7, 0')
    p(f's_add_u32 s8, s8, s{sT0}'); p('s_addc_u32 s9, s9, 0')
    srd(p, sK, 6, 1 << 20); srd(p, sV, 8, 1 << 20)
    srd(p, sWQ, 10, 448 * 8192)
    p(f's_mul_i32 s{sT0}, s{sG}, 458752')
    p(f's_add_u32 s12, s12, s{sT0}'); p('s_addc_u32 s13, s13, 0')
    srd(p, sWO, 12, 458752)
    srd(p, sMOD, 14, 10752)
    p(f's_lshl_b32 s{sT0}, s{sG}, 5'); p(f's_add_u32 s{sT0}, s{sT0}, s{sRB}')
    p(f's_mul_i32 s{sT0}, s{sT0}, 57344'); p(f's_add_u32 s{sT0}, s{sT0}, {WS_PART}')
    p(f's_add_u32 s4, s14, s{sT0}'); p('s_addc_u32 s5, s15, 0')
    srd(p, sPART, 4, 57344)
    if dbg:
        p(f's_add_u32 s4, s14, {WS_DBG}'); p('s_addc_u32 s5, s15, 0')
        srd(p, sDBG, 4, 0x4000000)
    p(f's_lshl_b32 s{sT0}, s{sRB}, 6'); p(f's_lshl_b32 s{sT1}, s{sW}, 4'); p(f's_add_u32 s{sT0}, s{sT0}, s{sT1}')
    p(f'v_add_u32 v{vT0}, s{sT0}, v{vC}')
    p(f'v_mul_u32_u24 v{vT0}, 896, v{vT0}')
    p(f'v_lshl_add_u32 v{vT0}, v{vG4}, 4, v{vT0}')
    XR = 128
    for ks in range(14):
        p(f'buffer_load_dwordx4 {vr(XR+4*ks,4)}, v{vT0}, s[{sX}:{sX+3}], 0 offen offset:{ks*64}')
    p(f'v_lshlrev_b32 v{vT1}, 5, v{vG4}')
    PSLOT = [184, 200, 216, 232, 128, 144, 160]
    def param_loads(x, ks):
        b = PSLOT[ks % 7]
        x(f'buffer_load_dwordx4 {vr(b,4)}, v{vT1}, s[{sMOD}:{sMOD+3}], 0 offen offset:{1792+ks*128}')
        x(f'buffer_load_dwordx4 {vr(b+4,4)}, v{vT1}, s[{sMOD}:{sMOD+3}], 0 offen offset:{1792+ks*128+16}')
        x(f'buffer_load_dwordx4 {vr(b+8,4)}, v{vT1}, s[{sMOD}:{sMOD+3}], 0 offen offset:{ks*128}')
        x(f'buffer_load_dwordx4 {vr(b+12,4)}, v{vT1}, s[{sMOD}:{sMOD+3}], 0 offen offset:{ks*128+16}')
    for ks in range(4): param_loads(p, ks)
    vWqD = 248
    p(f'v_lshlrev_b32 v{vWqD}, 4, v{vLane}')
    for jj in range(1, 8):
        p(f'v_add_u32 v{vWqD+jj}, {jj*8192}, v{vWqD}')
    p(f's_lshl_b32 s{sWqOff}, s{sW}, 16'); p(f's_lshl_b32 s{sT0}, s{sG}, 10'); p(f's_add_u32 s{sWqOff}, s{sWqOff}, s{sT0}')
    p(f's_mul_i32 s{sT3}, s{sW}, {8*1056}')
    def wq_dma(ks, jj, vWqD=vWqD):
        r = []
        r.append(Ins(f's_add_u32 m0, s{sT3}, {WQSLOT[ks%3] + jj*1056}'))
        if jj == 0 and ks > 0:
            r.append(Ins(f's_add_u32 s{sWqOff}, s{sWqOff}, {32*8192}'))
        else:
            r.append(Ins('s_nop 0'))
        r.append(TIns(f'buffer_load_dwordx4 v{vWqD+jj}, s[{sWQ}:{sWQ+3}], s{sWqOff} offen lds', f'wq{ks}'))
        return r
    for ks in range(3):
        for jj in range(8): p.items += wq_dma(ks, jj)
    XF = 16
    for ks in range(14):
        for d in range(4):
            r = XR + 4*ks + d
            p(f'v_lshlrev_b32 v{XF+8*ks+2*d}, 16, v{r}')
            p(f'v_and_b32 v{XF+8*ks+2*d+1}, s{sMask}, v{r}')
    for ks in range(4, 7): param_loads(p, ks)
    p(f'v_pk_add_f32 v[8:9], v[{XF}:{XF+1}], v[{XF+2}:{XF+3}]')
    p(f'v_pk_add_f32 v[10:11], v[{XF+4}:{XF+5}], v[{XF+6}:{XF+7}]')
    for i in range(4, 56):
        acc = 8 + 2 * (i & 1)
        p(f'v_pk_add_f32 v[{acc}:{acc+1}], v[{acc}:{acc+1}], v[{XF+2*i}:{XF+2*i+1}]')
    p('v_pk_add_f32 v[8:9], v[8:9], v[10:11]')
    p('v_add_f32 v8, v8, v9')
    allreduce_g4(p, 8, 9, 'v_add_f32')
    p(f'v_mul_f32 v8, {f2u(1.0/448):#x}, v8')
    for i in range(56):
        p(f'v_pk_add_f32 v[{XF+2*i}:{XF+2*i+1}], v[{XF+2*i}:{XF+2*i+1}], v[8:9] op_sel_hi:[1,0] neg_lo:[0,1] neg_hi:[0,1]')
    p(f'v_pk_mul_f32 v[10:11], v[{XF}:{XF+1}], v[{XF}:{XF+1}]')
    p(f'v_pk_mul_f32 v[12:13], v[{XF+2}:{XF+3}], v[{XF+2}:{XF+3}]')
    for i in range(2, 56):
        acc = 10 + 2 * (i & 1)
        p(f'v_pk_fma_f32 v[{acc}:{acc+1}], v[{XF+2*i}:{XF+2*i+1}], v[{XF+2*i}:{XF+2*i+1}], v[{acc}:{acc+1}]')
    p('v_pk_add_f32 v[10:11], v[10:11], v[12:13]')
    p('v_add_f32 v10, v10, v11')
    allreduce_g4(p, 10, 11, 'v_add_f32')
    p(f'v_mov_b32 v11, {f2u(1e-5):#x}')
    p(f'v_fmac_f32 v11, {f2u(1.0/448):#x}, v10')
    p('v_rsq_f32 v10, v11')
    p(f's_mul_i32 s{sT0}, s{sW}, 14336'); p(f's_add_u32 s{sT0}, s{sT0}, {HBUF}')
    p(f'v_and_b32 v12, 1, v{vG4}'); p('v_lshlrev_b32 v12, 9, v12')
    p(f'v_lshl_add_u32 v12, v{vC}, 4, v12')
    p(f'v_lshrrev_b32 v13, 1, v{vG4}'); p('v_lshl_add_u32 v12, v13, 3, v12')
    p(f'v_add_u32 v12, s{sT0}, v12')
    for ks in range(14):
        b = PSLOT[ks % 7]
        for i in range(4):
            p(f'v_pk_mul_f32 v[{b+2*i}:{b+2*i+1}], v[{b+2*i}:{b+2*i+1}], v[10:11] op_sel_hi:[1,0]')
        for i in range(4):
            x = XF + 8*ks + 2*i
            p(f'v_pk_fma_f32 v[{x}:{x+1}], v[{x}:{x+1}], v[{b+2*i}:{b+2*i+1}], v[{b+8+2*i}:{b+8+2*i+1}]')
        for i in range(4):
            x = XF + 8*ks + 2*i
            p(f'v_cvt_pk_bf16_f32 v{XF+8*ks+i}, v{x}, v{x+1}')
        p(f'ds_write_b64 v12, v[{XF+8*ks}:{XF+8*ks+1}] offset:{ks*1024}')
        p(f'ds_write_b64 v12, v[{XF+8*ks+2}:{XF+8*ks+3}] offset:{ks*1024+256}')
        if ks + 7 < 14: param_loads(p, ks + 7)
    flush(p.items)

    q = Asm()
    q(f'v_lshl_add_u32 v13, v{vG4}, 2, v{vR}')
    q('v_mul_u32_u24 v13, 1056, v13')
    q(f'v_lshl_add_u32 v13, v{vCq}, 3, v13')
    q(f's_lshl_b32 s{sT0}, s{sA}, 9'); q(f's_lshl_b32 s{sT1}, s{sKG}, 8'); q(f's_add_u32 s{sT0}, s{sT0}, s{sT1}')
    q(f'v_add_u32 v13, s{sT0}, v13')
    for s3 in range(3):
        q(f'v_add_u32 v{8+s3}, {WQSLOT[s3]}, v13')
    q(f'v_lshlrev_b32 v11, 4, v{vLane}')
    vWqD2 = 96
    for jj in range(8):
        q(f'v_add_u32 v{vWqD2+jj}, {jj*8192}, v11')
    q(f'v_add_u32 v11, {HBUF}, v11')
    vDmaKq = 14
    q(f'v_lshrrev_b32 v15, 5, v{vLane}')
    q(f'v_and_b32 v{vDmaKq}, 31, v{vLane}')
    q(f'v_xor_b32 v{vDmaKq}, v{vDmaKq}, v15')
    q(f'v_lshlrev_b32 v{vDmaKq}, 4, v{vDmaKq}')
    q(f'v_lshl_add_u32 v{vDmaKq}, v15, 9, v{vDmaKq}')
    q(f's_lshl_b32 s{sKoff}, s{sW}, 13')
    q(f's_add_u32 s{sKoff2}, s{sKoff}, 4096')
    q(f's_mul_i32 s{sKdst}, s{sW}, {8*1056}')
    q(f's_mul_i32 s{sVdst}, s{sW}, {8*1088}')
    q.items.append(Ins('s_waitcnt lgkmcnt(0)'))
    q.items.append(('waitvm', 'wq0'))
    q('s_barrier')
    QACC = 128
    def qacc(e, rs): return QACC + (e * 4 + rs) * 4
    BF = [64, 80]
    def a_read(ks, e):
        base = 8 + (ks % 3)
        f = FR(e)
        return [Ins(f'ds_read_b64_tr_b16 v[{f}:{f+1}], v{base} offset:{e*32}'),
                Ins(f'ds_read_b64_tr_b16 v[{f+2}:{f+3}], v{base} offset:{16896 + e*32}')]
    def b_read(ks, rs):
        b = BF[ks & 1] + rs * 4
        return [Ins(f'ds_read_b128 {vr(b,4)}, v11 offset:{(rs*14+ks)*1024}')]
    def k_dma(blk_buf, j, first):
        r = []
        r.append(Ins(f's_add_u32 m0, s{sKdst}, {KBUF[blk_buf] + (4*1056 if j >= 4 else 0) + (j & 3) * 32}'))
        r.append(Ins('s_nop 0'))
        return r
    for e in range(3): q.items += a_read(0, e)
    for rs in range(4): q.items += b_read(0, rs)
    q.items += a_read(0, 3)
    flush(q.items)
    def kdma_item(buf, j, vreg, tag):
        so = sKoff2 if j >= 4 else sKoff
        return [Ins(f's_add_u32 m0, s{sKdst}, {KBUF[buf] + (4*1056 if j >= 4 else 0) + (j & 3) * 32}'),
                Ins('s_nop 0'),
                TIns(f'buffer_load_dwordx4 v{vreg}, s[{sK}:{sK+3}], s{so} offen offset:{(j&3)*1024} lds', tag)]
    for ks in range(14):
        s = Seg(32)
        for qq in range(32):
            e = qq >> 2; rs = qq & 3
            c = '0' if ks == 0 else vr(qacc(e, rs), 4)
            s.mf[qq] = f'{MF} {vr(qacc(e,rs),4)}, {vr(FR(e),4)}, {vr(BF[ks&1]+rs*4,4)}, {c}'
        for e in range(4, 8):
            for it in a_read(ks, e): s.put(4 * (e - 3), it)
        if ks + 1 < 14:
            for rs in range(4):
                for it in b_read(ks + 1, rs): s.put(2 + 4 * rs, it)
            s.post[23].append(Ins('s_waitcnt lgkmcnt(0)'))
            s.post[23].append(('waitvm', f'wq{ks+1}'))
            s.post[23].append(Ins('s_barrier'))
            for it in a_read(ks + 1, 0) + a_read(ks + 1, 1): s.post[23].append(it)
            for it in a_read(ks + 1, 2): s.put(27, it)
            for it in a_read(ks + 1, 3): s.put(31, it)
        else:
            s.post[23].append(Ins('s_waitcnt lgkmcnt(0)'))
            s.post[23].append(Ins('s_barrier'))
        nxt = ks + 2
        if ks >= 1:
            for jj in range(8):
                pos = jj * 3
                if nxt < 14: its = wq_dma(nxt, jj, vWqD2)
                elif nxt == 14: its = kdma_item(0, jj, vDmaKq, 'k0')
                elif nxt == 15: its = kdma_item(1, jj, vDmaKq, 'k1')
                for it in its: s.put(pos, it)
            if nxt == 14:
                s.put(23, f's_add_u32 s{sKoff}, s{sKoff}, 32768'); s.put(23, f's_add_u32 s{sKoff2}, s{sKoff2}, 32768')
            if nxt == 15:
                s.put(23, f's_add_u32 s{sKoff}, s{sKoff}, 32768'); s.put(23, f's_add_u32 s{sKoff2}, s{sKoff2}, 32768')
        flush(s.items())
    x = Asm()
    x('s_nop 7')
    x(f'v_lshrrev_b32 v13, 1, v{vG4}')
    x('v_lshlrev_b32 v13, 8, v13')
    x(f'v_lshl_add_u32 v13, v{vC}, 4, v13')
    x(f'v_and_b32 v12, 1, v{vG4}')
    x('v_lshl_add_u32 v13, v12, 3, v13')
    x(f's_lshl_b32 s{sT0}, s{sA}, 15'); x(f's_lshl_b32 s{sT1}, s{sKG}, 12'); x(f's_add_u32 s{sT0}, s{sT0}, s{sT1}')
    x(f's_add_u32 s{sT0}, s{sT0}, {QBUF}')
    x(f'v_add_u32 v13, s{sT0}, v13')
    x(f's_mov_b32 s{sT0}, {f2u(CSCALE):#x}')
    tmp = 16
    n = 0
    for e in range(8):
        for rs in range(4):
            r = qacc(e, rs); t = tmp + (n % 8) * 2; n += 1
            for i in range(4): x(f'v_mul_f32 v{r+i}, s{sT0}, v{r+i}')
            x(f'v_cvt_pk_bf16_f32 v{t}, v{r}, v{r+1}')
            x(f'v_cvt_pk_bf16_f32 v{t+1}, v{r+2}, v{r+3}')
            x(f'ds_write_b64 v13, v[{t}:{t+1}] offset:{rs*8192 + (e>>1)*1024 + (e&1)*512}')
    x('s_waitcnt lgkmcnt(0)')
    x('s_barrier')
    x(f'v_lshlrev_b32 v13, 4, v{vLane}')
    x(f's_lshl_b32 s{sT0}, s{sA}, 15'); x(f's_add_u32 s{sT0}, s{sT0}, {QBUF}')
    x(f'v_add_u32 v13, s{sT0}, v13')
    x(f's_lshl_b32 s{sT1}, s{sKG}, 14')
    x(f'v_add_u32 v12, s{sT1}, v13')
    x(f'v_subrev_u32 v13, s{sT1}, v13')
    x('v_add_u32 v13, 16384, v13')
    for lr in range(4):
        for ds in range(8):
            base = 12 if lr < 2 else 13
            x(f'ds_read_b128 {ar(Q_(lr,ds),4)}, v{base} offset:{(lr&1)*8192 + ds*1024}')
    x('s_waitcnt lgkmcnt(0)')
    x.items.append(('waitvm', 'k0'))
    x('s_barrier')
    x(f'v_mov_b32 v{vDmaK}, v{vDmaKq}')
    x(f'v_lshrrev_b32 v15, 5, v{vLane}')
    x(f'v_lshlrev_b32 v14, 1, v15')
    x(f'v_and_b32 v{vDmaV}, 31, v{vLane}')
    x(f'v_xor_b32 v{vDmaV}, v{vDmaV}, v14')
    x(f'v_lshlrev_b32 v{vDmaV}, 4, v{vDmaV}')
    x(f'v_lshl_add_u32 v{vDmaV}, v15, 9, v{vDmaV}')
    x(f'v_lshrrev_b32 v13, 1, v{vC}')
    x('v_mul_u32_u24 v13, 1056, v13')
    x(f'v_and_b32 v14, 1, v{vC}')
    x('v_lshl_add_u32 v13, v14, 9, v13')
    x(f'v_xor_b32 v14, v14, v{vG4}')
    x('v_lshl_add_u32 v13, v14, 4, v13')
    x(f's_mul_i32 s{sT0}, s{sKG}, {16*1056}')
    x(f'v_add_u32 v{vKrd}, s{sT0}, v13')
    x(f'v_lshrrev_b32 v13, 1, v{vR}')
    x(f'v_lshl_add_u32 v13, v{vG4}, 1, v13')
    x('v_mul_u32_u24 v13, 1088, v13')
    x(f'v_and_b32 v14, 1, v{vR}')
    x('v_lshl_add_u32 v13, v14, 9, v13')
    x(f'v_lshl_add_u32 v13, v{vCq}, 3, v13')
    x(f's_mul_i32 s{sT0}, s{sKG}, {16*1088}'); x(f's_add_u32 s{sT0}, s{sT0}, {VBUF[0]}')
    x(f'v_add_u32 v13, s{sT0}, v13')
    x('v_lshlrev_b32 v14, 5, v14')
    x(f'v_add_u32 v{vVrdE}, v13, v14')
    x(f'v_sub_u32 v{vVrdO}, v13, v14')
    x(f's_lshl_b32 s{sVoff}, s{sW}, 13')
    x(f's_add_u32 s{sVoff2}, s{sVoff}, 4096')
    flush(x.items)
    if dbg == 'q':
        d = Asm()
        d(f's_lshl_b32 s{sT0}, s2, 2'); d(f's_add_u32 s{sT0}, s{sT0}, s{sW}'); d(f's_lshl_b32 s{sT0}, s{sT0}, 15')
        d(f'v_lshlrev_b32 v13, 4, v{vLane}')
        for i in range(32):
            d(f'buffer_store_dwordx4 {ar(128+4*i,4)}, v13, s[{sDBG}:{sDBG+3}], s{sT0} offen')
            d(f's_add_u32 s{sT0}, s{sT0}, 1024')
        d('s_waitcnt vmcnt(0)')
        flush(d.items)
        a.label('K2_end'); a('s_endpgm')
        return finish(a)

    def kdma(buf, j, tag):
        return kdma_item(buf, j, vDmaK, tag)
    def vdma(buf, j, tag):
        so = sVoff2 if j >= 4 else sVoff
        return [Ins(f's_add_u32 m0, s{sVdst}, {VBUF[buf] + (4*1088 if j >= 4 else 0) + (j & 3) * 64}'),
                Ins('s_nop 0'),
                TIns(f'buffer_load_dwordx4 v{vDmaV}, s[{sV}:{sV+3}], s{so} offen offset:{(j&3)*1024} lds', tag)]
    def adv(r1, r2):
        return [Ins(f's_add_u32 s{r1}, s{r1}, 32768'), Ins(f's_add_u32 s{r2}, s{r2}, 32768')]
    def k_read(buf, f):
        return [Ins(f'ds_read_b128 {vr(FR(f),4)}, v{vKrd} offset:{KBUF[buf] + (f>>3)*8*1056 + (f&7)*64}')]
    def v_read(buf, dt, f):
        base = vVrdE if (dt & 1) == 0 else vVrdO
        r = FR(f); o = VBUF[buf] - VBUF[0] + dt * 32
        return [Ins(f'ds_read_b64_tr_b16 v[{r}:{r+1}], v{base} offset:{o}'),
                Ins(f'ds_read_b64_tr_b16 v[{r+2}:{r+3}], v{base} offset:{o + 8*1088}')]
    def qk_mf(q, czero=False):
        kt = q >> 5; ds = (q >> 2) & 7; lr = q & 3
        c = ('0' if czero else vr(NEGM(lr), 4)) if ds == 0 else vr(S_(kt, lr), 4)
        return f'{MF} {vr(S_(kt,lr),4)}, {vr(FR(q>>2),4)}, {ar(Q_(lr,ds),4)}, {c}'
    def pv_mf(dt, lr, f, pb):
        o = oreg(dt, lr)
        return f'{MF} {o}, {vr(FR(f),4)}, {vr(P_(pb,lr),4)}, {o}'

    z = Asm()
    for j in range(8): z.items += vdma(0, j, 'v0')
    z.items += adv(sVoff, sVoff2)
    for f in range(4): z.items += k_read(0, f)
    flush(z.items)
    s = Seg(64)
    for q in range(64): s.mf[q] = qk_mf(q, czero=True)
    for f in range(4, 16):
        for it in k_read(0, f): s.put(4 * f - 13, it)
    zi = [f'v_mov_b32 v{vO+i}, 0' for i in range(128)] + [f'v_accvgpr_write_b32 a{i}, 0' for i in range(128)]
    for i, t in enumerate(zi): s.put(i // 4, t)
    s.post[55].append(Ins('s_waitcnt lgkmcnt(0)'))
    s.post[55].append(('waitvm', 'k1'))
    s.post[55].append(Ins('s_barrier'))
    for j in range(8):
        for it in kdma(0, j, 'k0'): s.post[56 + j].append(it)
    s.post[63] += adv(sKoff, sKoff2)
    flush(s.items())
    i0 = Asm()
    i0('s_nop 7')
    for f in range(4): i0.items += k_read(1, f)
    def rowmax(x, lr, dst):
        s0 = S_(0, lr); s1 = S_(1, lr)
        x(f'v_max3_f32 v{dst}, v{s0}, v{s0+1}, v{s0+2}')
        x(f'v_max3_f32 v{dst}, v{dst}, v{s0+3}, v{s1}')
        x(f'v_max3_f32 v{dst}, v{dst}, v{s1+1}, v{s1+2}')
        x(f'v_max_f32 v{dst}, v{dst}, v{s1+3}')
        allreduce_g4(x, dst, vT2, 'v_max_f32')
    def softmax_plain(x, pb):
        for lr in range(4):
            for kt in range(2):
                sb = S_(kt, lr); e = vPt + 4 * kt
                for i in range(4): x(f'v_exp_f32 v{e+i}, v{sb+i}')
            x('s_nop 0')
            e = vPt
            x(f'v_add_f32 v{vLt+lr}, v{e}, v{e+1}')
            for i in range(2, 8): x(f'v_add_f32 v{vLt+lr}, v{vLt+lr}, v{e+i}')
            for i in range(4): x(f'v_cvt_pk_bf16_f32 v{P_(pb,lr)+i}, v{e+2*i}, v{e+2*i+1}')
    i0(f's_mov_b32 s{sT0}, {f2u(U0):#x}')
    for lr in range(4):
        rowmax(i0, lr, vT0)
        i0(f'v_add_f32 v{vT0}, s{sT0}, v{vT0}')
        for i in range(4): i0(f'v_sub_f32 v{NEGM(lr)+i}, 0, v{vT0}')
        for kt in range(2):
            for i in range(4): i0(f'v_sub_f32 v{S_(kt,lr)+i}, v{S_(kt,lr)+i}, v{vT0}')
        i0(f'v_mov_b32 v{vL+lr}, 0')
    softmax_plain(i0, 0)
    i0(f's_mov_b32 s{sCnt}, 15')
    flush(i0.items)

    rare_sites = []
    def iteration(b, last=False):
        s = Seg(128)
        kb = 1 - b
        for q in range(64): s.mf[q] = qk_mf(q)
        for q in range(64, 128): s.mf[q] = pv_mf((q - 64) >> 2, q & 3, q >> 2, b)
        for lr in range(4): s.put(lr, f'v_add_f32 v{vL+lr}, v{vL+lr}, v{vLt+lr}')
        for f in range(4, 16):
            for it in k_read(kb, f): s.put(4 * f - 13, it)
        s.post[55].append(Ins('s_waitcnt lgkmcnt(0)'))
        s.post[55].append(('waitvm', [f'v{b}'] + (['k0'] if last else [])))
        s.post[55].append(Ins('s_barrier'))
        for f in (16, 17):
            for it in v_read(b, f - 16, f): s.put(55, it)
        for f in range(18, 32):
            for it in v_read(b, f - 16, f): s.put(4 * f - 13, it)
        s.post[119].append(Ins('s_waitcnt lgkmcnt(0)'))
        if not last:
            s.post[119].append(('waitvm', f'k{b}'))
            s.post[119].append(Ins('s_barrier'))
            for f in (0, 1):
                for it in k_read(b, f): s.put(119, it)
            for it in k_read(b, 2): s.put(123, it)
            for it in k_read(b, 3): s.put(127, it)
        else:
            s.post[119].append(('waitvm', 'v1'))
            s.post[119].append(Ins('s_barrier'))
            for f in (0, 1):
                for it in v_read(1, f, f): s.put(119, it)
            for it in v_read(1, 2, 2): s.put(123, it)
            for it in v_read(1, 3, 3): s.put(127, it)
        for j in range(8):
            for it in vdma(1 - b, j, f'v{1-b}'): s.put(4 + 6 * j, it, 3)
        for it in adv(sVoff, sVoff2): s.put(53, it, 2)
        if not last:
            for j in range(8):
                for it in kdma(kb, j, f'k{kb}'): s.put(58 + 7 * j, it, 3)
            for it in adv(sKoff, sKoff2): s.put(117, it, 2)
        else:
            for j in range(16):
                for it in wo_dma(j >> 3, j & 7): s.put(57 + 4 * j if 57 + 4*j < 119 else 118, it, 3)
        sm = []
        for kt in range(2):
            for lr in range(4):
                sb = S_(kt, lr); e = vPt + 4 * (lr & 1); lt = vLt + lr; pb = P_(1 - b, lr) + 2 * kt
                early = (34 if kt == 0 else 66)
                sm.append((early, 8, f'v_exp_f32 v{e}, v{sb}'))
                sm.append((early, 8, f'v_exp_f32 v{e+1}, v{sb+1}'))
                sm.append((early, 8, f'v_exp_f32 v{e+2}, v{sb+2}'))
                if kt == 0: sm.append((early, 4, f'v_add_f32 v{lt}, v{e}, v{e+1}'))
                else: sm.append((early, 4, f'v_add_f32 v{lt}, v{lt}, v{e}'))
                sm.append((early, 4, f'v_cvt_pk_bf16_f32 v{pb}, v{e}, v{e+1}'))
                sm.append((early, 8, f'v_exp_f32 v{e+3}, v{sb+3}'))
                if kt == 1: sm.append((early, 4, f'v_add_f32 v{lt}, v{lt}, v{e+1}'))
                sm.append((early, 4, f'v_add_f32 v{lt}, v{lt}, v{e+2}'))
                sm.append((early, 0, None))
                sm.append((early, 4, f'v_add_f32 v{lt}, v{lt}, v{e+3}'))
                sm.append((early, 4, f'v_cvt_pk_bf16_f32 v{pb+1}, v{e+2}, v{e+3}'))
        q = 0
        for early, c, t in sm:
            q = max(q, early)
            if t is None:
                q += 1; continue
            while q < 127 and s.cost[q] + c > 8: q += 1
            q = min(q, 127)
            s.put(q, t, c)
        iteration.last_q = q
        s.put(127, f'v_max3_f32 v{vT0}, v{vLt}, v{vLt+1}, v{vLt+2}')
        s.put(127, f'v_max_f32 v{vT0}, v{vT0}, v{vLt+3}')
        s.put(127, f'v_cmp_lt_f32 vcc, s{sThr}, v{vT0}')
        site = len(rare_sites); rare_sites.append(1 - b)
        s.put(127, f's_mov_b32 s{sSite}, {site}')
        s.put(127, 's_nop 0')
        s.put(127, f's_cbranch_vccnz K2_rare{1-b}')
        its = s.items()
        its.append(f'K2_ret{site}:')
        return its
    vDmaWo = vT1
    def wo_dma(tau, jj):
        nb = tau >> 1; hf = tau & 1
        r = [Ins(f's_add_u32 m0, s{sT3}, {WOSLOT[tau & 3] + jj * 1024}'),
             Ins(f's_add_u32 s{sT2}, s{sWoOff}, {(256*hf + 8*jj) * 896 + nb * 128}'),
             TIns(f'buffer_load_dwordx4 v{vDmaWo}, s[{sWO}:{sWO+3}], s{sT2} offen lds', f'wo{tau}')]
        return r
    pre = Asm()
    pre(f'v_lshrrev_b32 v{vT0}, 3, v{vLane}')
    pre(f'v_mul_u32_u24 v{vDmaWo}, 896, v{vT0}')
    pre(f'v_bfe_u32 v{vT0}, v{vLane}, 1, 2')
    pre(f'v_xor_b32 v{vT0}, v{vT0}, v{vG4}')
    pre(f'v_lshl_add_u32 v{vDmaWo}, v{vT0}, 5, v{vDmaWo}')
    pre(f'v_and_b32 v{vT0}, 1, v{vLane}')
    pre(f'v_lshl_add_u32 v{vDmaWo}, v{vT0}, 4, v{vDmaWo}')
    pre(f's_mul_i32 s{sWoOff}, s{sW}, {64*896}')
    pre(f's_lshl_b32 s{sT3}, s{sW}, 13')
    flush(pre.items)
    body = ['K2_loop:'] + iteration(0) + iteration(1) + L(f's_sub_u32 s{sCnt}, s{sCnt}, 1\ns_cmp_lg_u32 s{sCnt}, 0\ns_cbranch_scc1 K2_loop')
    a.items.extend(resolve_loop(body, st))
    flush(iteration(0, last=True))
    s = Seg(64)
    for q in range(64): s.mf[q] = pv_mf(q >> 2, q & 3, q >> 2, 1)
    for lr in range(4): s.put(lr, f'v_add_f32 v{vL+lr}, v{vL+lr}, v{vLt+lr}')
    for f in range(4, 16):
        for it in v_read(1, f, f): s.put(4 * f - 13, it)
    its = s.items()
    e = Asm()
    for lr in range(4): allreduce_g4(e, vL + lr, vT2, 'v_add_f32')
    flush(its + e.items)
    m = Asm()
    m('s_waitcnt lgkmcnt(0)')
    m('s_barrier')
    m(f'v_lshlrev_b32 v8, 3, v{vLane}')
    m(f's_lshl_b32 s{sT0}, s{sW}, 10'); m(f's_add_u32 s{sT0}, s{sT0}, {STAT}')
    m(f'v_add_u32 v9, s{sT0}, v8')
    m(f's_xor_b32 s{sT1}, s{sW}, 2'); m(f's_lshl_b32 s{sT0}, s{sT1}, 10'); m(f's_add_u32 s{sT0}, s{sT0}, {STAT}')
    m(f'v_add_u32 v10, s{sT0}, v8')
    for xx in range(2):
        m(f'v_mov_b32 v{24+2*xx}, v{NEGM(2+xx)}')
        m(f'v_mov_b32 v{25+2*xx}, v{vL+2+xx}')
        m(f'ds_write_b64 v9, v[{24+2*xx}:{25+2*xx}] offset:{xx*512}')
    m(f'v_lshlrev_b32 v8, 4, v{vLane}')
    m(f's_lshl_b32 s{sT0}, s{sW}, 14'); m(f's_add_u32 s{sT0}, s{sT0}, {XAREA}')
    m(f'v_add_u32 v11, s{sT0}, v8')
    m(f's_lshl_b32 s{sT0}, s{sT1}, 14'); m(f's_add_u32 s{sT0}, s{sT0}, {XAREA}')
    m(f'v_add_u32 v12, s{sT0}, v8')
    RC = 64
    for rnd in range(2):
        for dd in range(8):
            for xx in range(2):
                m(f'ds_write_b128 v11, {ar(OG_(8*rnd+dd, 2+xx),4)} offset:{(dd*2+xx)*1024}')
        m('s_waitcnt lgkmcnt(0)')
        m('s_barrier')
        if rnd == 0:
            for xx in range(2):
                m(f'ds_read_b64 v[{28+2*xx}:{29+2*xx}], v10 offset:{xx*512}')
        for dd in range(8):
            for xx in range(2):
                m(f'ds_read_b128 {vr(RC+(dd*2+xx)*4,4)}, v12 offset:{(dd*2+xx)*1024}')
        if rnd == 0:
            for xx in range(2):
                no, lo_ = NEGM(xx), vL + xx
                nt, lt_ = 28 + 2 * xx, 29 + 2 * xx
                so, sot = 32 + 4 * xx, 34 + 4 * xx
                m(f'v_min_f32 v{vT0}, v{no}, v{nt}')
                m(f'v_sub_f32 v{so}, v{vT0}, v{no}')
                m(f'v_sub_f32 v{sot}, v{vT0}, v{nt}')
                m(f'v_exp_f32 v{so}, v{so}')
                m(f'v_exp_f32 v{sot}, v{sot}')
                m('s_nop 0')
                m(f'v_mul_f32 v{vT0}, v{so}, v{lo_}')
                m(f'v_fmac_f32 v{vT0}, v{sot}, v{lt_}')
                m(f'v_rcp_f32 v{vT0}, v{vT0}')
                m('s_nop 0')
                m(f'v_mul_f32 v{so}, v{so}, v{vT0}')
                m(f'v_mul_f32 v{sot}, v{sot}, v{vT0}')
        for dd in range(8):
            dt = 8 * rnd + dd
            for xx in range(2):
                so, sot = 32 + 4 * xx, 34 + 4 * xx
                r = RC + (dd * 2 + xx) * 4; k = OK_(dt, xx)
                for h2 in range(2):
                    m(f'v_pk_mul_f32 v[{r+2*h2}:{r+2*h2+1}], v[{r+2*h2}:{r+2*h2+1}], v[{sot}:{sot+1}] op_sel_hi:[1,0]')
                for h2 in range(2):
                    m(f'v_pk_fma_f32 v[{k+2*h2}:{k+2*h2+1}], v[{k+2*h2}:{k+2*h2+1}], v[{so}:{so+1}], v[{r+2*h2}:{r+2*h2+1}] op_sel_hi:[1,0,1]')
        m('s_waitcnt lgkmcnt(0)')
        m('s_barrier')
    m(f'v_lshlrev_b32 v8, 4, v{vLane}')
    m(f's_lshl_b32 s{sT0}, s{sA}, 15'); m(f's_lshl_b32 s{sT1}, s{sKG}, 11'); m(f's_add_u32 s{sT0}, s{sT0}, s{sT1}')
    m(f's_add_u32 s{sT0}, s{sT0}, {XAREA}')
    m(f'v_add_u32 v9, s{sT0}, v8')
    for e_ in range(8):
        for xx in range(2):
            t0 = OK_(2 * e_, xx); t1 = OK_(2 * e_ + 1, xx)
            m(f'v_cvt_pk_bf16_f32 v{t0}, v{t0}, v{t0+1}')
            m(f'v_cvt_pk_bf16_f32 v{t0+1}, v{t0+2}, v{t0+3}')
            m(f'v_cvt_pk_bf16_f32 v{t0+2}, v{t1}, v{t1+1}')
            m(f'v_cvt_pk_bf16_f32 v{t0+3}, v{t1+2}, v{t1+3}')
            m(f'ds_write_b128 v9, {vr(t0,4)} offset:{e_*4096 + xx*1024}')
    m('s_waitcnt lgkmcnt(0)')
    m('s_barrier')
    m(f'v_add_u32 v9, {XAREA}, v8')
    for i in range(64):
        m(f'ds_read_b128 {ar(4*i,4)}, v9 offset:{i*1024}')
    m('s_waitcnt lgkmcnt(0)')
    m.items.append(('waitvm', 'wo0'))
    m('s_barrier')
    flush(m.items)
    if dbg == 'o':
        d = Asm()
        d(f's_cmp_lg_u32 s{sW}, 0'); d('s_cbranch_scc1 K2_end')
        d(f's_lshl_b32 s{sT0}, s2, 16')
        for i in range(64):
            d(f'buffer_store_dwordx4 {ar(4*i,4)}, v8, s[{sDBG}:{sDBG+3}], s{sT0} offen')
            d(f's_add_u32 s{sT0}, s{sT0}, 1024')
        d('s_waitcnt vmcnt(0)')
        flush(d.items)
        a.label('K2_end'); a('s_endpgm')
        rare_code(a, rare_sites, rowmax, softmax_plain)
        return finish(a)
    w_ = Asm()
    w_(f'v_and_b32 v9, 1, v{vG4}')
    w_(f'v_lshl_add_u32 v9, v9, 2, v{vR}')
    w_('v_lshrrev_b32 v10, 1, v9')
    w_(f'v_xor_b32 v10, s{sW}, v10')
    w_('v_lshlrev_b32 v10, 5, v10')
    w_('v_lshl_add_u32 v10, v9, 7, v10')
    w_(f'v_lshl_add_u32 v10, v{vCq}, 3, v10')
    w_(f'v_lshrrev_b32 v9, 1, v{vG4}')
    w_('v_lshl_add_u32 v10, v9, 10, v10')
    w_(f'v_add_u32 v11, {WOSLOT[2]}, v10')
    w_(f's_lshl_b32 s{sT0}, s{sW}, 11')
    w_(f'v_add_u32 v12, s{sT0}, v8')
    def wo_read(tau, f):
        base = 10 if (tau & 3) < 2 else 11
        o = (tau & 1) * 32768 + f * 4096
        r = FR(f)
        return [Ins(f'ds_read_b64_tr_b16 v[{r}:{r+1}], v{base} offset:{o}'),
                Ins(f'ds_read_b64_tr_b16 v[{r+2}:{r+3}], v{base} offset:{o + 2048}')]
    for f in range(4): w_.items += wo_read(0, f)
    flush(w_.items)
    WACC = [48, 64]; WT = 80
    def wo_epilogue(nb):
        r = []
        ac = WACC[nb & 1]
        for pp in range(2):
            t = WT + 4 * pp
            for xx in range(2):
                sreg = ac + (2 * pp + xx) * 4
                r.append(Ins(f'v_cvt_pk_bf16_f32 v{t+2*xx}, v{sreg}, v{sreg+1}'))
                r.append(Ins(f'v_cvt_pk_bf16_f32 v{t+2*xx+1}, v{sreg+2}, v{sreg+3}'))
            r.append(TIns(f'buffer_store_dwordx4 {vr(t,4)}, v12, s[{sPART}:{sPART+3}], s{sT1} offen offset:{pp*1024}', 'st'))
        return r
    for tau in range(14):
        nb = tau >> 1; hf = tau & 1
        s = Seg(32)
        ac = WACC[nb & 1]
        for q in range(32):
            f = q >> 2; rs = q & 3; ks = hf * 8 + f
            c = '0' if (hf == 0 and f == 0) else vr(ac + rs * 4, 4)
            s.mf[q] = f'{MF} {vr(ac+rs*4,4)}, {vr(FR(f),4)}, {ar((ks*4+rs)*4,4)}, {c}'
        for f in range(4, 8):
            for it in wo_read(tau, f): s.put(4 * f - 13, it)
        if tau + 1 < 14:
            s.post[23].append(Ins('s_waitcnt lgkmcnt(0)'))
            s.post[23].append(('waitvm', f'wo{tau+1}'))
            s.post[23].append(Ins('s_barrier'))
            for it in wo_read(tau + 1, 0) + wo_read(tau + 1, 1): s.post[23].append(it)
            for it in wo_read(tau + 1, 2): s.put(27, it)
            for it in wo_read(tau + 1, 3): s.put(31, it)
        nx = tau + 2 if tau < 2 else tau + 2
        lst = [2, 3] if tau == 0 else [tau + 3]
        pos = 0
        for tt in lst:
            if tt < 14:
                for jj in range(8):
                    pq = (jj * 3 if len(lst) == 1 else (pos * 2) % 32)
                    pos += 1
                    for it in wo_dma(tt, jj): s.put(min(pq, 31), it, 3)
        if hf == 0 and nb > 0:
            s.put(8, f's_mov_b32 s{sT1}, {(nb-1)*8192}')
            for i, it in enumerate(wo_epilogue(nb - 1)): s.put(9 + i, it)
        flush(s.items())
    f_ = Asm()
    f_('s_nop 7')
    f_(f's_mov_b32 s{sT1}, {6*8192}')
    f_.items += wo_epilogue(6)
    flush(f_.items)
    a.label('K2_end'); a('s_endpgm')
    rare_code(a, rare_sites, rowmax, softmax_plain)
    return finish(a)

def rare_code(a, sites, rowmax, softmax_plain):
    for pb in range(2):
        x = Asm()
        x.label(f'K2_rare{pb}')
        x('s_nop 7'); x('s_nop 7')
        x(f's_mov_b32 s{sT0}, {f2u(U0):#x}')
        for lr in range(4):
            rowmax(x, lr, vT0)
            x(f'v_add_f32 v{vT0}, s{sT0}, v{vT0}')
            x(f'v_max_f32 v{vT0}, 0, v{vT0}')
            x(f'v_ceil_f32 v{vT0}, v{vT0}')
            for i in range(4): x(f'v_sub_f32 v{NEGM(lr)+i}, v{NEGM(lr)+i}, v{vT0}')
            for kt in range(2):
                for i in range(4): x(f'v_sub_f32 v{S_(kt,lr)+i}, v{S_(kt,lr)+i}, v{vT0}')
            x(f'v_exp_f32 v{vT1 if False else vPt}, -v{vT0}')
            x('s_nop 0')
            f = vPt
            x(f'v_mul_f32 v{vL+lr}, v{vL+lr}, v{f}')
            for dt in range(16):
                if lr < 2:
                    for i in range(4): x(f'v_mul_f32 v{OK_(dt,lr)+i}, v{OK_(dt,lr)+i}, v{f}')
                else:
                    for i in range(4): x(f'v_accvgpr_read_b32 v{vPt+1+i}, a{OG_(dt,lr)+i}')
                    for i in range(4): x(f'v_mul_f32 v{vPt+1+i}, v{vPt+1+i}, v{f}')
                    for i in range(4): x(f'v_accvgpr_write_b32 a{OG_(dt,lr)+i}, v{vPt+1+i}')
        softmax_plain(x, pb)
        x('s_nop 1')
        for i, p in enumerate(sites):
            if p == pb:
                x(f's_cmp_eq_u32 s{sSite}, {i}')
                x(f's_cbranch_scc1 K2_ret{i}')
        x('s_endpgm')
        a.items.extend(x.items)

def finish(a):
    probs = check_hazards(a.ins(), 'k2') + check_waits(a.ins(), 'k2')
    for p in probs[:40]: print(p)
    return kernel_text('k2_attn_kernel', a.text(), vgpr=512, sgpr=96, accum=256), ('k2_attn_kernel', 256, 256, LDS_BYTES)
```

```python
from asmlib import *
from k2 import f2u, WS_PART, MF, allreduce_g4
WS_H = 0x1000000
WS_X1 = 0x1800000

def gen_k3():
    a = Asm(); st = State()
    def flush(items): a.items.extend(resolve_linear(items, st))
    sX, sPART, sMOD, sW1, sH, sX1 = 16, 20, 24, 28, 32, 36
    sV, sRBK, sHS, sT0, sT1, sT2, sT3, sMask, sDst, sSrc = 40, 41, 42, 43, 44, 45, 46, 47, 48, 49
    SLOT = 28672; HB = 4 * SLOT
    STATS = HB + 28672
    p = Asm()
    p('s_cmp_ge_u32 s2, 256'); p('s_cbranch_scc1 K3_end')
    p('s_load_dwordx2 s[4:5], s[0:1], 0')
    p('s_load_dwordx2 s[6:7], s[0:1], 48')
    p('s_load_dwordx2 s[8:9], s[0:1], 96')
    p('v_and_b32 v1, 63, v0')
    p('v_lshrrev_b32 v6, 6, v0')
    p('v_and_b32 v2, 15, v0')
    p(f'v_readfirstlane_b32 s{sV}, v6')
    p('v_lshrrev_b32 v3, 4, v1')
    p('v_bfe_u32 v4, v0, 2, 2')
    p('v_and_b32 v5, 3, v0')
    p(f's_and_b32 s{sRBK}, s2, 7'); p(f's_lshr_b32 s{sT0}, s2, 5'); p(f's_lshl_b32 s{sT0}, s{sT0}, 3'); p(f's_or_b32 s{sRBK}, s{sRBK}, s{sT0}')
    p(f's_lshr_b32 s{sHS}, s2, 3'); p(f's_and_b32 s{sHS}, s{sHS}, 3')
    p(f's_mov_b32 s{sMask}, 0xffff0000')
    p('s_waitcnt lgkmcnt(0)')
    srd(p, sX, 4, 1835008)
    srd(p, sW1, 6, 448 * 3584)
    srd(p, sMOD, 8, 10752)
    p(f's_add_u32 s4, s8, {WS_PART}'); p('s_addc_u32 s5, s9, 0'); srd(p, sPART, 4, 8 * 1835008)
    p(f's_add_u32 s4, s8, {WS_H}'); p('s_addc_u32 s5, s9, 0'); srd(p, sH, 4, 128 * 56 * 1024)
    p(f's_add_u32 s4, s8, {WS_X1}'); p('s_addc_u32 s5, s9, 0'); srd(p, sX1, 4, 1835008)
    p(f's_lshr_b32 s{sT0}, s{sRBK}, 1'); p(f's_mul_i32 s{sT0}, s{sT0}, 57344')
    p(f's_and_b32 s{sT1}, s{sRBK}, 1'); p(f's_lshl_b32 s{sT1}, s{sT1}, 10'); p(f's_add_u32 s{sT0}, s{sT0}, s{sT1}')
    p(f's_lshl_b32 s{sT1}, s{sV}, 12'); p(f's_add_u32 s{sT0}, s{sT0}, s{sT1}')
    p('v_lshlrev_b32 v6, 4, v1')
    p(f'v_add_u32 v7, s{sT0}, v6')
    PR = 64
    p(f's_mov_b32 s{sT0}, 0')
    for g in range(8):
        for t in range(2):
            p(f'buffer_load_dwordx4 {vr(PR+(g*2+t)*4,4)}, v7, s[{sPART}:{sPART+3}], s{sT0} offen offset:{t*2048}')
        if g < 7: p(f's_add_u32 s{sT0}, s{sT0}, 1835008')
    p(f's_lshl_b32 s{sT0}, s{sRBK}, 5')
    p(f'v_add_u32 v8, s{sT0}, v2')
    p('v_mul_u32_u24 v8, 896, v8')
    p('v_lshl_add_u32 v8, v3, 3, v8')
    p(f's_lshl_b32 s{sT0}, s{sV}, 6')
    p(f'v_add_u32 v8, s{sT0}, v8')
    p(f's_mov_b32 s{sT1}, 14336')
    XR = 40
    for x in range(2):
        for t in range(2):
            so = '0' if x == 0 else f's{sT1}'
            p(f'buffer_load_dwordx2 {vr(XR+(x*2+t)*2,2)}, v8, s[{sX}:{sX+3}], {so} offen offset:{t*32}')
    p(f's_lshl_b32 s{sT0}, s{sV}, 7')
    p('v_lshlrev_b32 v9, 4, v3')
    p(f'v_add_u32 v9, s{sT0}, v9')
    GA, SB, CB = 16, 24, 32
    for base, sec in ((GA, 2), (SB, 3), (CB, 4)):
        for t in range(2):
            off = sec * 1792 + t * 64
            if off <= 4095:
                p(f'buffer_load_dwordx4 {vr(base+4*t,4)}, v9, s[{sMOD}:{sMOD+3}], 0 offen offset:{off}')
            else:
                p(f's_mov_b32 s{sT0}, {sec*1792}')
                p(f'buffer_load_dwordx4 {vr(base+4*t,4)}, v9, s[{sMOD}:{sMOD+3}], s{sT0} offen offset:{t*64}')
    p('v_lshrrev_b32 v10, 3, v1')
    p('v_mul_u32_u24 v10, 3584, v10')
    p('v_bfe_u32 v11, v1, 1, 2')
    p('v_xor_b32 v11, v11, v3')
    p('v_lshl_add_u32 v10, v11, 5, v10')
    p('v_and_b32 v11, 1, v1')
    p('v_lshl_add_u32 v10, v11, 4, v10')
    for k in range(2):
        p(f's_lshl_b32 s{sT0}, s{sV}, 1'); p(f's_add_u32 s{sT0}, s{sT0}, {k}')
        p(f's_mul_i32 s{sT1}, s{sT0}, 37'); p(f's_lshr_b32 s{sT1}, s{sT1}, 8')
        p(f's_mul_i32 s{sT2}, s{sT1}, 7'); p(f's_sub_u32 s{sT2}, s{sT0}, s{sT2}')
        p(f's_mul_i32 s{sT1}, s{sT1}, {8*3584}'); p(f's_lshl_b32 s{sT2}, s{sT2}, 7'); p(f's_add_u32 s{sT1}, s{sT1}, s{sT2}')
        p(f's_mul_i32 s{sT2}, s{sHS}, 896'); p(f's_add_u32 s{sSrc+k}, s{sT1}, s{sT2}')
    p(f's_lshl_b32 s{sDst}, s{sV}, 11')
    def w1_dma(ks, k):
        return [Ins(f's_add_u32 m0, s{sDst}, {(ks & 3) * SLOT + k * 1024}'),
                Ins(f's_add_u32 s{sT3}, s{sSrc+k}, {ks * 32 * 3584}'),
                TIns(f'buffer_load_dwordx4 v10, s[{sW1}:{sW1+3}], s{sT3} offen lds', f'w{ks}')]
    for ks in range(4):
        for k in range(2): p.items += w1_dma(ks, k)
    AC = 48
    for g in range(8):
        for t in range(2):
            r = PR + (g * 2 + t) * 4
            for d in range(4):
                x = d >> 1; o = AC + (t * 2 + x) * 4 + (d & 1) * 2
                if g == 0:
                    p(f'v_lshlrev_b32 v{o}, 16, v{r+d}')
                    p(f'v_and_b32 v{o+1}, s{sMask}, v{r+d}')
                else:
                    p(f'v_lshlrev_b32 v12, 16, v{r+d}')
                    p(f'v_and_b32 v13, s{sMask}, v{r+d}')
                    p(f'v_pk_add_f32 v[{o}:{o+1}], v[{o}:{o+1}], v[12:13]')
    for t in range(2):
        for x in range(2):
            o = AC + (t * 2 + x) * 4
            xr = XR + (x * 2 + t) * 2
            for r in range(4):
                p(f'v_cvt_pk_bf16_f32 v{o+r}, 0, v{o+r}')
            for r in range(4):
                p(f'v_mul_f32 v{o+r}, v{o+r}, v{GA+4*t+r}')
            for r in range(4):
                p(f'v_cvt_pk_bf16_f32 v{o+r}, 0, v{o+r}')
            for d in range(2):
                p(f'v_lshlrev_b32 v12, 16, v{xr+d}')
                p(f'v_and_b32 v13, s{sMask}, v{xr+d}')
                p(f'v_pk_add_f32 v[{o+2*d}:{o+2*d+1}], v[{o+2*d}:{o+2*d+1}], v[12:13]')
            for d in range(2):
                p(f'v_cvt_pk_bf16_f32 v{xr+d}, v{o+2*d}, v{o+2*d+1}')
            for d in range(2):
                p(f'v_lshlrev_b32 v{o+2*d}, 16, v{xr+d}')
                p(f'v_and_b32 v{o+2*d+1}, s{sMask}, v{xr+d}')
    p(f's_cmp_lg_u32 s{sHS}, 0'); p('s_cbranch_scc1 K3_nox1')
    p(f's_mov_b32 s{sT1}, 14336')
    flush(p.items)
    p = Asm()
    for x in range(2):
        for t in range(2):
            so = '0' if x == 0 else f's{sT1}'
            p(f'buffer_store_dwordx2 {vr(XR+(x*2+t)*2,2)}, v8, s[{sX1}:{sX1+3}], {so} offen offset:{t*32}')
    a.items.extend(p.items)
    a.label('K3_nox1')
    p = Asm()
    for x in range(2):
        o0 = AC + x * 4; o1 = AC + (2 + x) * 4
        m = 64 + 2 * x
        p(f'v_add_f32 v{m}, v{o0}, v{o0+1}')
        for r in (o0 + 2, o0 + 3, o1, o1 + 1, o1 + 2, o1 + 3): p(f'v_add_f32 v{m}, v{m}, v{r}')
        allreduce_g4(p, m, 12, 'v_add_f32')
        p(f'v_mul_f32 v{m}, {f2u(1/32):#x}, v{m}')
        p(f'v_sub_f32 v12, v{o0}, v{m}')
        p(f'v_mul_f32 v{m+1}, v12, v12')
        for r in (o0 + 1, o0 + 2, o0 + 3, o1, o1 + 1, o1 + 2, o1 + 3):
            p(f'v_sub_f32 v12, v{r}, v{m}')
            p(f'v_fmac_f32 v{m+1}, v12, v12')
        allreduce_g4(p, m + 1, 12, 'v_add_f32')
    p('v_lshlrev_b32 v12, 7, v2')
    p(f's_lshl_b32 s{sT0}, s{sV}, 3'); p(f's_add_u32 s{sT0}, s{sT0}, {STATS}')
    p(f'v_add_u32 v13, s{sT0}, v12')
    for x in range(2): p(f'ds_write_b64 v13, v[{64+2*x}:{65+2*x}] offset:{x*2048}')
    p('s_waitcnt lgkmcnt(0)')
    p('s_barrier')
    p(f'v_add_u32 v13, {STATS}, v12')
    SR = 72
    for x in range(2):
        for i in range(7): p(f'ds_read_b128 {vr(SR+28*x+4*i,4)}, v13 offset:{x*2048+i*16}')
    for x in range(2):
        b = SR + 28 * x
        mean = 64 + 2 * x; rs_ = mean + 1
        p(f'v_add_f32 v{mean}, v{b}, v{b+2}')
        for i in range(2, 14): p(f'v_add_f32 v{mean}, v{mean}, v{b+2*i}')
        p(f'v_mul_f32 v{mean}, {f2u(1/14):#x}, v{mean}')
        p(f'v_add_f32 v{rs_}, v{b+1}, v{b+3}')
        for i in range(2, 14): p(f'v_add_f32 v{rs_}, v{rs_}, v{b+2*i+1}')
        p('v_mov_b32 v13, 0')
        for i in range(14):
            p(f'v_sub_f32 v12, v{b+2*i}, v{mean}')
            p('v_fmac_f32 v13, v12, v12')
        p(f'v_fmac_f32 v{rs_}, {f2u(32.0):#x}, v13')
        p(f'v_mov_b32 v13, {f2u(1e-5):#x}')
        p(f'v_fmac_f32 v13, {f2u(1/448):#x}, v{rs_}')
        p(f'v_rsq_f32 v{rs_}, v13')
    p('v_lshlrev_b32 v6, 4, v1')
    p(f's_lshl_b32 s{sT0}, s{sV}, 10'); p(f's_add_u32 s{sT0}, s{sT0}, {HB}')
    p(f'v_add_u32 v13, s{sT0}, v6')
    for x in range(2):
        mean = 64 + 2 * x; rs_ = mean + 1
        o = 72 + 4 * x
        for t in range(2):
            src = AC + (t * 2 + x) * 4
            for r in range(4):
                p(f'v_sub_f32 v{src+r}, v{src+r}, v{mean}')
                p(f'v_mul_f32 v{src+r}, v{src+r}, v{rs_}')
                p(f'v_fma_f32 v{src+r}, v{src+r}, v{CB+4*t+r}, v{SB+4*t+r}')
            p(f'v_cvt_pk_bf16_f32 v{o+2*t}, v{src}, v{src+1}')
            p(f'v_cvt_pk_bf16_f32 v{o+2*t+1}, v{src+2}, v{src+3}')
        p(f'ds_write_b128 v13, {vr(o,4)} offset:{x*14336}')
    p('v_and_b32 v12, 1, v3'); p('v_lshl_add_u32 v12, v12, 2, v4')
    p('v_lshrrev_b32 v14, 1, v3'); p('v_mul_u32_u24 v14, 7168, v14')
    p('v_lshl_add_u32 v14, v12, 7, v14')
    p('v_lshl_add_u32 v14, v5, 3, v14')
    p(f's_lshr_b32 s{sT0}, s{sV}, 1'); p(f's_lshl_b32 s{sT0}, s{sT0}, 10')
    p(f'v_add_u32 v14, s{sT0}, v14')
    p('v_lshrrev_b32 v12, 1, v12')
    p(f's_and_b32 s{sT0}, s{sV}, 1'); p(f's_lshl_b32 s{sT0}, s{sT0}, 1')
    AY = [16, 17, 18, 19]
    for y in range(2):
        p(f's_add_u32 s{sT1}, s{sT0}, {y}')
        p(f'v_xor_b32 v15, s{sT1}, v12')
        p(f'v_lshl_add_u32 v{AY[y]}, v15, 5, v14')
        p(f'v_add_u32 v{AY[y+2]}, {2*SLOT}, v{AY[y]}')
    p(f'v_add_u32 v20, {HB}, v6')
    p('s_waitcnt lgkmcnt(0)')
    p.items.append(('waitvm', 'w0'))
    p('s_barrier')
    flush(p.items)
    ACC = 48
    def rd(ks):
        r = []
        s_ = ks & 1
        for y in range(2):
            base = AY[y + 2 * ((ks & 3) >> 1)]; o = (ks & 1) * SLOT
            f = 24 + (s_ * 2 + y) * 4
            r.append(Ins(f'ds_read_b64_tr_b16 v[{f}:{f+1}], v{base} offset:{o}'))
            r.append(Ins(f'ds_read_b64_tr_b16 v[{f+2}:{f+3}], v{base} offset:{o+14336}'))
        for x in range(2):
            f = 72 + (s_ * 2 + x) * 4
            r.append(Ins(f'ds_read_b128 {vr(f,4)}, v20 offset:{(x*14+ks)*1024}'))
        return r
    flush(rd(0))
    for ks in range(14):
        p = Asm()
        s_ = ks & 1
        if ks + 1 < 14:
            p.items.append(('waitvm', f'w{ks+1}'))
            p('s_barrier')
            p.items += rd(ks + 1)
            if ks >= 1 and ks + 3 < 14:
                for k in range(2): p.items += w1_dma(ks + 3, k)
        for y in range(2):
            for x in range(2):
                ac = ACC + (y * 2 + x) * 4
                c = '0' if ks == 0 else vr(ac, 4)
                p(f'{MF} {vr(ac,4)}, {vr(24+(s_*2+y)*4,4)}, {vr(72+(s_*2+x)*4,4)}, {c}')
        flush(p.items)
    p = Asm()
    p('s_nop 7')
    p(f's_mul_i32 s{sT0}, s{sRBK}, {2*56}'); p(f's_mul_i32 s{sT1}, s{sHS}, 14'); p(f's_add_u32 s{sT0}, s{sT0}, s{sT1}')
    p(f's_add_u32 s{sT0}, s{sT0}, s{sV}'); p(f's_lshl_b32 s{sT0}, s{sT0}, 10')
    p(f's_add_u32 s{sT1}, s{sT0}, {56*1024}')
    for x in range(2):
        o = 72 + 4 * x
        for y in range(2):
            ac = ACC + (y * 2 + x) * 4
            for r in range(4): p(f'v_max_f32 v{ac+r}, 0, v{ac+r}')
            p(f'v_cvt_pk_bf16_f32 v{o+2*y}, v{ac}, v{ac+1}')
            p(f'v_cvt_pk_bf16_f32 v{o+2*y+1}, v{ac+2}, v{ac+3}')
        p(f'buffer_store_dwordx4 {vr(o,4)}, v6, s[{sH}:{sH+3}], s{sT0 if x == 0 else sT1} offen')
    flush(p.items)
    a.label('K3_end'); a('s_endpgm')
    probs = check_hazards(a.ins(), 'k3') + check_waits(a.ins(), 'k3')
    for q in probs[:40]: print(q)
    return kernel_text('k3_ffn1_kernel', a.text(), vgpr=128, sgpr=64, accum=128), ('k3_ffn1_kernel', 256, 896, STATS + 4096)

def gen_k4():
    a = Asm(); st = State()
    def flush(items): a.items.extend(resolve_linear(items, st))
    sH, sW2, sMOD, sX1, sOUT = 16, 20, 24, 28, 32
    sV, sRB, sNB, sT0, sT1, sT2, sT3, sDst, sSrc, sMask = 40, 41, 42, 43, 44, 45, 46, 47, 48, 49
    p = Asm()
    p('s_cmp_ge_u32 s2, 224'); p('s_cbranch_scc1 K4_end')
    p('s_load_dwordx2 s[4:5], s[0:1], 56')
    p('s_load_dwordx2 s[6:7], s[0:1], 80')
    p('s_load_dwordx2 s[8:9], s[0:1], 96')
    p('v_and_b32 v1, 63, v0'); p('v_lshrrev_b32 v6, 6, v0'); p('v_and_b32 v2, 15, v0')
    p(f'v_readfirstlane_b32 s{sV}, v6')
    p('v_lshrrev_b32 v3, 4, v1'); p('v_bfe_u32 v4, v0, 2, 2'); p('v_and_b32 v5, 3, v0')
    p(f's_lshr_b32 s{sT0}, s2, 3'); p(f's_mul_i32 s{sT1}, s{sT0}, 37'); p(f's_lshr_b32 s{sT1}, s{sT1}, 8')
    p(f's_mul_i32 s{sT2}, s{sT1}, 7'); p(f's_sub_u32 s{sNB}, s{sT0}, s{sT2}')
    p(f's_and_b32 s{sRB}, s2, 7'); p(f's_lshl_b32 s{sT1}, s{sT1}, 3'); p(f's_add_u32 s{sRB}, s{sRB}, s{sT1}')
    p(f's_mov_b32 s{sMask}, 0xffff0000')
    p('s_waitcnt lgkmcnt(0)')
    srd(p, sW2, 4, 1792 * 896)
    srd(p, sOUT, 6, 1835008)
    srd(p, sMOD, 8, 10752)
    p(f's_add_u32 s4, s8, {WS_H}'); p('s_addc_u32 s5, s9, 0'); srd(p, sH, 4, 128 * 56 * 1024)
    p(f's_add_u32 s4, s8, {WS_X1}'); p('s_addc_u32 s5, s9, 0'); srd(p, sX1, 4, 1835008)
    p('v_lshrrev_b32 v10, 3, v1'); p('v_mul_u32_u24 v10, 896, v10')
    p('v_bfe_u32 v11, v1, 1, 2'); p('v_xor_b32 v11, v11, v3'); p('v_lshl_add_u32 v10, v11, 5, v10')
    p('v_and_b32 v11, 1, v1'); p('v_lshl_add_u32 v10, v11, 4, v10')
    p(f's_mul_i32 s{sSrc}, s{sV}, {7*32*896}'); p(f's_lshl_b32 s{sT0}, s{sNB}, 7'); p(f's_add_u32 s{sSrc}, s{sSrc}, s{sT0}')
    p(f's_lshl_b32 s{sDst}, s{sV}, 14')
    def w2_dma(j, rg):
        return [Ins(f's_add_u32 m0, s{sDst}, {(j & 3) * 4096 + rg * 1024}'),
                Ins(f's_add_u32 s{sT3}, s{sSrc}, {(j * 32 + rg * 8) * 896}'),
                TIns(f'buffer_load_dwordx4 v10, s[{sW2}:{sW2+3}], s{sT3} offen lds', f'w{j}')]
    p('v_lshlrev_b32 v6, 4, v1')
    p(f's_mul_i32 s{sT0}, s{sRB}, {4*56}'); p(f's_mul_i32 s{sT1}, s{sV}, 7'); p(f's_add_u32 s{sT0}, s{sT0}, s{sT1}'); p(f's_lshl_b32 s{sT0}, s{sT0}, 10')
    p(f'v_add_u32 v7, s{sT0}, v6')
    BR = 128
    def b_load(j):
        r = []
        for rs in range(4):
            r.append(Ins(f's_mov_b32 s{sT2}, {rs*56*1024 + (j//4)*4096}'))
            r.append(Ins(f'buffer_load_dwordx4 {vr(BR+(j*4+rs)*4,4)}, v7, s[{sH}:{sH+3}], s{sT2} offen offset:{(j%4)*1024}'))
        return r
    for j in range(4):
        for rg in range(4): p.items += w2_dma(j, rg)
        p.items += b_load(j)
    for j in range(4, 7): p.items += b_load(j)
    p(f's_lshl_b32 s{sT0}, s{sRB}, 6'); p(f's_lshr_b32 s{sT1}, s{sV}, 1'); p(f's_lshl_b32 s{sT1}, s{sT1}, 4'); p(f's_add_u32 s{sT0}, s{sT0}, s{sT1}')
    p(f'v_add_u32 v8, s{sT0}, v2'); p('v_mul_u32_u24 v8, 896, v8')
    p('v_lshl_add_u32 v8, v3, 3, v8')
    p(f's_lshl_b32 s{sT0}, s{sNB}, 7'); p(f's_and_b32 s{sT1}, s{sV}, 1'); p(f's_lshl_b32 s{sT1}, s{sT1}, 6'); p(f's_add_u32 s{sT0}, s{sT0}, s{sT1}')
    p(f'v_add_u32 v8, s{sT0}, v8')
    for t in range(2):
        p(f'buffer_load_dwordx2 v[{16+2*t}:{17+2*t}], v8, s[{sX1}:{sX1+3}], 0 offen offset:{t*32}')
    p(f's_lshl_b32 s{sT0}, s{sT0}, 1'); p(f's_add_u32 s{sT0}, s{sT0}, {5*1792}')
    p('v_lshlrev_b32 v9, 4, v3')
    for t in range(2):
        p(f'buffer_load_dwordx4 {vr(20+4*t,4)}, v9, s[{sMOD}:{sMOD+3}], s{sT0} offen offset:{t*64}')
    p('v_and_b32 v12, 1, v3'); p('v_lshl_add_u32 v12, v12, 2, v4')
    p('v_lshrrev_b32 v14, 1, v3'); p('v_lshlrev_b32 v14, 10, v14')
    p('v_lshl_add_u32 v14, v12, 7, v14'); p('v_lshl_add_u32 v14, v5, 3, v14')
    p(f'v_add_u32 v14, s{sDst}, v14')
    p('v_lshrrev_b32 v12, 1, v12')
    AN = [28, 29, 30, 31]
    for nt in range(4):
        p(f'v_xor_b32 v15, {nt}, v12')
        p(f'v_lshl_add_u32 v{AN[nt]}, v15, 5, v14')
    flush(p.items)
    ACC = 64
    def rd(j):
        r = []
        for nt in range(4):
            f = 32 + ((j & 1) * 4 + nt) * 4
            o = (j & 3) * 4096
            r.append(Ins(f'ds_read_b64_tr_b16 v[{f}:{f+1}], v{AN[nt]} offset:{o}'))
            r.append(Ins(f'ds_read_b64_tr_b16 v[{f+2}:{f+3}], v{AN[nt]} offset:{o+2048}'))
        return r
    flush([('waitvm', 'w0')] + rd(0))
    for j in range(7):
        p = Asm()
        if j + 1 < 7:
            p.items.append(('waitvm', f'w{j+1}'))
            p.items += rd(j + 1)
        for nt in range(4):
            for rs in range(4):
                ac = ACC + (rs * 4 + nt) * 4
                c = '0' if j == 0 else vr(ac, 4)
                p(f'{MF} {vr(ac,4)}, {vr(32+((j&1)*4+nt)*4,4)}, {vr(BR+(j*4+rs)*4,4)}, {c}')
        if j + 4 < 7:
            for rg in range(4): p.items += w2_dma(j + 4, rg)
        flush(p.items)
    p = Asm()
    p('s_waitcnt vmcnt(0) lgkmcnt(0)')
    p('s_barrier')
    p('s_nop 7')
    p(f'v_add_u32 v12, s{sDst}, v6')
    for i in range(16): p(f'ds_write_b128 v12, {vr(ACC+4*i,4)} offset:{i*1024}')
    p('s_waitcnt lgkmcnt(0)')
    p('s_barrier')
    p(f's_lshl_b32 s{sT0}, s{sV}, 11')
    p(f'v_add_u32 v12, s{sT0}, v6')
    p(f'v_add_u32 v13, 65536, v12')
    for u in range(8):
        for t in range(2):
            base = 12 if u < 4 else 13
            p(f'ds_read_b128 {vr(ACC+(u*2+t)*4,4)}, v{base} offset:{(u&3)*16384 + t*1024}')
    for u in range(1, 8):
        for t in range(2):
            for h in range(2):
                d = ACC + t * 4 + 2 * h; s_ = ACC + (u * 2 + t) * 4 + 2 * h
                p(f'v_pk_add_f32 v[{d}:{d+1}], v[{d}:{d+1}], v[{s_}:{s_+1}]')
    for t in range(2):
        o = ACC + 4 * t
        for r in range(4): p(f'v_cvt_pk_bf16_f32 v{o+r}, 0, v{o+r}')
        for r in range(4): p(f'v_mul_f32 v{o+r}, v{o+r}, v{20+4*t+r}')
        for r in range(4): p(f'v_cvt_pk_bf16_f32 v{o+r}, 0, v{o+r}')
        for d in range(2):
            p(f'v_lshlrev_b32 v12, 16, v{16+2*t+d}')
            p(f'v_and_b32 v13, s{sMask}, v{16+2*t+d}')
            p(f'v_pk_add_f32 v[{o+2*d}:{o+2*d+1}], v[{o+2*d}:{o+2*d+1}], v[12:13]')
        for d in range(2): p(f'v_cvt_pk_bf16_f32 v{16+2*t+d}, v{o+2*d}, v{o+2*d+1}')
        p(f'buffer_store_dwordx2 v[{16+2*t}:{17+2*t}], v8, s[{sOUT}:{sOUT+3}], 0 offen offset:{t*32}')
    flush(p.items)
    a.label('K4_end'); a('s_endpgm')
    probs = check_hazards(a.ins(), 'k4') + check_waits(a.ins(), 'k4')
    for q in probs[:40]: print(q)
    return kernel_text('k4_ffn2_kernel', a.text(), vgpr=240, sgpr=64, accum=240), ('k4_ffn2_kernel', 224, 512, 131072)
```

```python
import sys
from asmlib import *
import asmlib, k1, k2, k3
def main():
    out = sys.argv[1] if len(sys.argv) > 1 else 'cur.s'
    dbg = sys.argv[2] if len(sys.argv) > 2 else None
    if dbg == 'prof': asmlib.PROF = True; dbg = None
    ks = []; ls = []
    t, l = k2.gen_k2(dbg=dbg); ks.append(t); ls.append(l)
    if dbg is None:
        t, l = k3.gen_k3(); ks.append(t); ls.append(l)
        t, l = k3.gen_k4(); ks.append(t); ls.append(l)
    open(out, 'w').write(file_text(ls, ks))
main()
```

```python
import re

NAME = 'adaLN_cond__gqa_block_cached__dense_activation_relu__prompt'

def vr(i, n=1):
    return f'v{i}' if n == 1 else f'v[{i}:{i+n-1}]'
def ar(i, n=1):
    return f'a{i}' if n == 1 else f'a[{i}:{i+n-1}]'
def sr(i, n=1):
    return f's{i}' if n == 1 else f's[{i}:{i+n-1}]'

_REG = re.compile(r'^(-|abs\()?\s*([vas])(?:(\d+)|\[(\d+):(\d+)\])\)?$')

def parse_reg(tok):
    tok = tok.strip()
    if tok in ('vcc', 'exec', 'm0', 'scc'):
        return [(tok, 0)]
    m = _REG.match(tok)
    if not m: return []
    k = m.group(2)
    if m.group(3) is not None:
        return [(k, int(m.group(3)))]
    return [(k, i) for i in range(int(m.group(4)), int(m.group(5)) + 1)]

class Ins:
    __slots__ = ('text', 'op', 'dst', 'src', 'kind', 'ops')
    def __init__(self, text):
        self.text = text
        t = text.split(';')[0].strip()
        parts = t.split(None, 1)
        self.op = parts[0]
        rest = parts[1] if len(parts) > 1 else ''
        ops = [o.strip() for o in rest.split(',')] if rest else []
        clean = []
        for o in ops:
            toks = o.split()
            clean.append(toks[0] if toks else '')
        self.ops = clean
        op = self.op
        R = [parse_reg(o) for o in clean]
        flat = lambda l: [x for y in l for x in y]
        dst, src = [], []
        if op.startswith('v_mfma'):
            self.kind = 'mfma'; dst = R[0]; src = flat(R[1:])
        elif op.startswith('ds_read') or op.startswith('ds_bpermute') or op.startswith('ds_swizzle'):
            self.kind = 'ds'; dst = R[0]; src = flat(R[1:])
        elif op.startswith('ds_write'):
            self.kind = 'ds'; src = flat(R)
        elif op.startswith('buffer_load') or op.startswith('global_load'):
            self.kind = 'vmem'
            if ' lds' in t:
                src = flat(R) + [('m0', 0)]
            else:
                dst = R[0]; src = flat(R[1:])
        elif op.startswith('buffer_store') or op.startswith('global_store'):
            self.kind = 'vmem'; src = flat(R)
        elif op.startswith('buffer_atomic') or op.startswith('global_atomic'):
            self.kind = 'vmem'; src = flat(R)
            if ' sc0' in t: dst = R[0]
        elif op.startswith('buffer_') :
            self.kind = 'vmem'
        elif op.startswith('v_cmp'):
            self.kind = 'valu'; dst = R[0]; src = flat(R[1:])
        elif op.startswith('v_permlane') :
            self.kind = 'valu'; dst = R[0] + R[1]; src = R[0] + R[1]
        elif op.startswith('v_readfirstlane') or op.startswith('v_readlane'):
            self.kind = 'valu'; dst = R[0]; src = flat(R[1:])
        elif op.startswith('v_'):
            self.kind = 'valu'; dst = R[0]; src = flat(R[1:])
            if op.startswith('v_fmac') or op.startswith('v_dot2c') or op.startswith('v_mac') or 'dpp' in op or 'dpp' in t or 'row_' in t:
                src = src + R[0]
            if op.startswith('v_cndmask') and len(clean) == 3: src = src + [('vcc', 0)]
            if op.startswith('v_add_co') or op.startswith('v_addc_co') or op.startswith('v_sub_co'):
                dst = R[0] + R[1]; src = flat(R[2:])
        elif op.startswith('s_waitcnt') or op in ('s_barrier', 's_nop', 's_endpgm', 's_setprio', 's_sleep', 's_branch') or op.startswith('s_cbranch'):
            self.kind = 'sctl'
        elif op.startswith('s_load') or op.startswith('s_memtime') or op.startswith('s_memrealtime'):
            self.kind = 'smem'; dst = R[0]; src = flat(R[1:])
        elif op.startswith('s_cmp'):
            self.kind = 'salu'; src = flat(R)
        elif op.startswith('s_'):
            self.kind = 'salu'; dst = R[0]; src = flat(R[1:])
        else:
            raise ValueError('unknown op ' + text)
        self.dst = dst; self.src = src

TRANS = ('v_exp_f32', 'v_log_f32', 'v_rcp_f32', 'v_rsq_f32', 'v_sqrt_f32', 'v_sin_f32', 'v_cos_f32')

def states(ins):
    if ins.op == 's_nop':
        return int(ins.ops[0], 0) + 1
    return 1

def mfma_passes(op):
    if '32x32x16' in op: return 8
    if '16x16x32' in op: return 4
    raise ValueError(op)

def check_hazards(seq, where=''):
    probs = []
    n = len(seq)
    for i, c in enumerate(seq):
        if c.kind == 'sctl': continue
        dist = 0
        j = i - 1
        csrc = set(c.src); cdst = set(c.dst)
        while j >= 0 and dist < 20:
            p = seq[j]
            pd = set(p.dst)
            need = 0; why = ''
            if p.kind == 'mfma':
                ps = mfma_passes(p.op)
                if c.kind == 'mfma':
                    cA = set(parse_reg(c.ops[1])) | set(parse_reg(c.ops[2]))
                    cC = set(parse_reg(c.ops[3]))
                    if pd & cA: need = {4: 8, 8: 12}[ps]; why = 'mfma D->A/B'
                    elif pd & cC and (pd != cC): need = {4: 6, 8: 10}[ps]; why = 'mfma D->C overlap'
                    elif pd & cdst and not (pd == cdst and pd == cC) and pd != cdst: need = {4: 6, 8: 10}[ps]; why = 'mfma D/D partial'
                elif c.kind in ('valu', 'ds', 'vmem'):
                    if pd & (csrc | cdst): need = {4: 8, 8: 12}[ps]; why = 'mfma D->valu/mem'
                    if c.kind == 'valu':
                        pC = set(parse_reg(p.ops[3]))
                        if pC & cdst: need = max(need, {4: 3, 8: 7}[ps]); why = why or 'mfma C WAR'
            elif p.kind == 'valu':
                pv = {r for r in pd if r[0] in 'va'}
                psg = {r for r in pd if r[0] in ('s', 'vcc')}
                if c.kind == 'mfma' and pv & csrc: need = 2; why = 'valu->mfma'
                if c.kind == 'valu':
                    if p.op.replace('_e32', '').replace('_e64', '') in TRANS and pv & csrc and c.op not in TRANS: need = max(need, 1); why = 'trans->valu'
                    if p.op.replace('_e32', '').replace('_e64', '') in TRANS and pv & csrc and c.op in TRANS: need = max(need, 1); why = 'trans->trans(pad)'
                    if c.op.startswith('v_permlane') and pv & csrc: need = max(need, 2); why = 'valu->permlane'
                    if (c.op.startswith('v_readfirstlane') or c.op.startswith('v_readlane')) and pv & csrc: need = max(need, 1); why = 'valu->readlane'
                    if ('row_' in c.text or 'quad_perm' in c.text) and pv & csrc: need = max(need, 2); why = 'valu->dpp'
                    if psg & csrc: need = max(need, 2); why = 'valu sgpr->valu'
                if c.kind == 'vmem' and {r for r in psg if r[0] == 's'} & csrc: need = max(need, 5); why = 'valu sgpr->vmem'
                if c.kind == 'salu' and psg & csrc: need = max(need, 1); why = 'valu sgpr->salu(pad)'
            elif p.kind == 'salu':
                if ('m0', 0) in pd and c.kind == 'vmem' and ('m0', 0) in csrc: need = 1; why = 'm0->dma'
            elif p.kind == 'vmem':
                if ('store' in p.op) and ('x4' in p.op or 'x3' in p.op) and c.kind == 'valu':
                    data = set(parse_reg(p.ops[0])) if p.op.startswith('buffer') else set(parse_reg(p.ops[1]))
                    if data & cdst: need = 2; why = 'store data WAR'
            if need > dist:
                probs.append(f'{where} hazard {why}: need {need} have {dist}: [{p.text}] -> [{c.text}]')
            dist += states(p)
            j -= 1
    return probs

def check_waits(seq, where=''):
    probs = []
    lg = []
    vm = []
    for c in seq:
        if c.op == 's_waitcnt':
            m = re.search(r'lgkmcnt\((\d+)\)', c.text)
            if m:
                k = int(m.group(1))
                while len(lg) > k: lg.pop(0)
            m = re.search(r'vmcnt\((\d+)\)', c.text)
            if m:
                k = int(m.group(1))
                while len(vm) > k: vm.pop(0)
            continue
        touched = set(c.src) | set(c.dst)
        for q, nm in ((lg, 'lgkm'), (vm, 'vm')):
            for d in q:
                if d & touched:
                    probs.append(f'{where} unwaited {nm} result used by [{c.text}]')
                    break
        if c.kind == 'ds': lg.append(set(c.dst))
        elif c.kind == 'smem': lg.append(set(c.dst))
        elif c.kind == 'vmem': vm.append(set(c.dst))
    return probs

class Asm:
    def __init__(self):
        self.items = []
    def __call__(self, s):
        for l in s.strip('\n').split('\n'):
            l = l.strip()
            if not l: continue
            if l.startswith(';'):
                self.items.append(l); continue
            if l.endswith(':'):
                self.items.append(l); continue
            self.items.append(Ins(l))
    def label(self, s): self.items.append(s + ':')
    def comment(self, s): self.items.append('; ' + s)
    def extend(self, other): self.items.extend(other.items)
    def ins(self): return [x for x in self.items if isinstance(x, Ins)]
    def text(self):
        out = []
        for x in self.items:
            if isinstance(x, Ins): out.append('    ' + x.text)
            else: out.append(x)
        return '\n'.join(out) + '\n'
    def mark(self): return len(self.items)
    def since(self, m): return [x for x in self.items[m:] if isinstance(x, Ins)]

def kernel_text(name, body, vgpr, sgpr, accum):
    return f'''.text
.globl {name}
.p2align 8
.type {name},@function
{name}:
{body}.section .rodata,"a"
.p2align 6
.amdhsa_kernel {name}
  .amdhsa_next_free_vgpr {vgpr}
  .amdhsa_next_free_sgpr {sgpr}
  .amdhsa_accum_offset {accum}
  .amdhsa_group_segment_fixed_size 0
  .amdhsa_kernarg_size 104
  .amdhsa_user_sgpr_count 2
  .amdhsa_user_sgpr_kernarg_segment_ptr 1
  .amdhsa_system_sgpr_workgroup_id_x 1
.end_amdhsa_kernel
'''

def header():
    return open('cdna_kernels/%s.s.ref' % NAME).read().split('; Override launch geometry')[0]

def file_text(launches, kernels):
    s = header()
    for (k, g, b, lds) in launches:
        s += f'; @launch kernel={k} grid=({g},1,1) block=({b},1,1) lds={lds}\n'
    s += '.amdgcn_target "amdgcn-amd-amdhsa--gfx950"\n'
    s += '.text\n.p2align 8\ncode_begin:\n'
    s += ''.join(kernels)
    s += '.text\ncode_end:\n    s_endpgm\n'
    return s

def srd(a, dst, lo, nbytes):
    a(f's_mov_b32 s{dst}, s{lo}')
    a(f's_and_b32 s{dst+1}, s{lo+1}, 0xffff')
    a(f's_mov_b32 s{dst+2}, {nbytes}')
    a(f's_mov_b32 s{dst+3}, 0x00020000')

class State:
    def __init__(self):
        self.lg = []
        self.vm = []
    def copy(self):
        s = State(); s.lg = list(self.lg); s.vm = list(self.vm); return s
    def sig(self):
        return (tuple(tuple(sorted(d)) for d in self.lg), tuple((tuple(sorted(d)), t) for d, t in self.vm))

def resolve(items, st):
    waits = {}
    for idx, c in enumerate(items):
        if isinstance(c, str): continue
        if isinstance(c, tuple):
            if c[0] == 'waitvm':
                tags = c[1] if isinstance(c[1], (list, tuple, set)) else [c[1]]
                last = -1
                for i, (d, t) in enumerate(st.vm):
                    if t in tags: last = i
                n = len(st.vm) - 1 - last if last >= 0 else None
                if n is not None:
                    n = min(n, 63)
                    waits.setdefault(idx, [None, None])[1] = n
                    del st.vm[:len(st.vm) - n]
                else:
                    waits.setdefault(idx, [None, None])
            continue
        if c.op == 's_waitcnt':
            m = re.search(r'lgkmcnt\((\d+)\)', c.text)
            if m:
                k = int(m.group(1));
                if len(st.lg) > k: del st.lg[:len(st.lg) - k]
            m = re.search(r'vmcnt\((\d+)\)', c.text)
            if m:
                k = int(m.group(1))
                if len(st.vm) > k: del st.vm[:len(st.vm) - k]
            continue
        touched = set(c.src) | set(c.dst)
        if touched:
            last = -1
            for i, d in enumerate(st.lg):
                if d & touched: last = i
            if last >= 0:
                n = min(len(st.lg) - 1 - last, 15)
                waits.setdefault(idx, [None, None])[0] = n
                del st.lg[:len(st.lg) - n]
            last = -1
            for i, (d, t) in enumerate(st.vm):
                if d & touched: last = i
            if last >= 0:
                n = min(len(st.vm) - 1 - last, 63)
                waits.setdefault(idx, [None, None])[1] = n
                del st.vm[:len(st.vm) - n]
        if c.kind in ('ds', 'smem'):
            st.lg.append(frozenset(c.dst))
            if c.kind == 'smem' : pass
        elif c.kind == 'vmem':
            st.vm.append((frozenset(c.dst), getattr(c, 'tag', None)))
    return waits

def merge_waits(w1, w2):
    out = {}
    for k in set(w1) | set(w2):
        a = w1.get(k, [None, None]); b = w2.get(k, [None, None])
        out[k] = [x if y is None else (y if x is None else min(x, y)) for x, y in zip(a, b)]
    return out

def apply_waits(items, waits):
    out = []
    for idx, c in enumerate(items):
        w = waits.get(idx)
        if w and (w[0] is not None or w[1] is not None):
            s = 's_waitcnt'
            if w[1] is not None: s += f' vmcnt({w[1]})'
            if w[0] is not None: s += f' lgkmcnt({w[0]})'
            out.append(Ins(s))
        if not isinstance(c, tuple): out.append(c)
    return out

def resolve_linear(items, st):
    return apply_waits(items, resolve(items, st))

def resolve_loop(items, st):
    s1 = st.copy(); w1 = resolve(items, s1)
    s2 = s1.copy(); w2 = resolve(items, s2)
    s3 = s2.copy(); w3 = resolve(items, s3)
    assert s2.sig() == s3.sig(), 'loop state not stable'
    w = merge_waits(merge_waits(w1, w2), w3)
    st.lg = s3.lg; st.vm = s3.vm
    return apply_waits(items, w)

class TIns(Ins):
    __slots__ = ('tag',)
    def __init__(self, text, tag):
        super().__init__(text); self.tag = tag

class Seg:
    def __init__(self, n):
        self.n = n; self.mf = [None] * n
        self.pre = [[] for _ in range(n)]; self.post = [[] for _ in range(n)]
        self.cost = [0] * n
    def put(self, q, item, cost=4):
        if isinstance(item, str): item = Ins(item)
        self.post[q].append(item); self.cost[q] += cost
    def items(self):
        out = []
        for q in range(self.n):
            out += self.pre[q]
            if self.mf[q] is not None: out.append(Ins(self.mf[q]) if isinstance(self.mf[q], str) else self.mf[q])
            out += self.post[q]
        return out


PROF = False
WS_PROF = 0x3000000
class Prof:
    def __init__(self, kidx, base, n=14):
        self.k = kidx; self.base = base; self.cnt = 0; self.n = n
    def stamp(self, cyc=False):
        if not PROF: return []
        r = self.base + 2 + self.cnt; self.cnt += 1
        assert self.cnt <= self.n
        op = 's_memtime' if cyc else 's_memrealtime'
        return [Ins(f'{op} s[{self.base}:{self.base+1}]'), Ins('s_waitcnt lgkmcnt(0)'), Ins(f's_mov_b32 s{r}, s{self.base}')]
    def store(self, a, ws_lo, wave_sgpr, tmp_s, vtmp, label):
        if not PROF: return
        a(f's_cmp_lg_u32 s{wave_sgpr}, 0')
        a(f's_cbranch_scc1 {label}')
        a(f's_add_u32 s{tmp_s}, s{ws_lo}, {WS_PROF + self.k * 256 * 128}')
        a(f's_addc_u32 s{tmp_s+1}, s{ws_lo+1}, 0')
        a(f's_and_b32 s{tmp_s+1}, s{tmp_s+1}, 0xffff')
        a(f's_mov_b32 s{tmp_s+2}, {256*128}')
        a(f's_mov_b32 s{tmp_s+3}, 0x00020000')
        a(f's_lshl_b32 s{self.base+1}, s2, 7')
        a(f'v_mov_b32 v{vtmp+1}, s{self.base+1}')
        for i in range(self.cnt):
            a(f'v_mov_b32 v{vtmp}, s{self.base+2+i}')
            a(f'buffer_store_dword v{vtmp}, v{vtmp+1}, s[{tmp_s}:{tmp_s+3}], 0 offen offset:{4*i}')
            a('s_nop 1')

def code_prefetch(a, name, nthreads, sbase, vtmp, vtmp2, dsts, lo='code_begin', hi='code_end'):
    a(f's_getpc_b64 s[{sbase}:{sbase+1}]')
    a.items.append(f'{name}_pc:')
    a(f's_sub_u32 s{sbase}, s{sbase}, {name}_pc-{lo}')
    a(f's_subb_u32 s{sbase+1}, s{sbase+1}, 0')
    a(f'v_lshlrev_b32 v{vtmp}, 7, v0')
    for k, d in enumerate(dsts):
        if k > 0: a(f'v_add_u32 v{vtmp}, {nthreads*128}, v{vtmp}')
        a(f'v_min_u32 v{vtmp2}, {hi}-{lo}-4, v{vtmp}')
        a(f'global_load_dword {d}, v{vtmp2}, s[{sbase}:{sbase+1}]')
```

```python
from asmlib import *
import asmlib
WS_MOD = 0
LOG2E = 0x3fb8aa3b

def gen_k1():
    a = Asm()
    a('s_cmp_ge_u32 s2, 42')
    a('s_cbranch_scc1 K1_end')
    pf = Prof(0, 40)
    a.items += pf.stamp()
    a('s_load_dwordx2 s[4:5], s[0:1], 64')
    a('s_load_dwordx2 s[6:7], s[0:1], 72')
    a('s_load_dwordx2 s[8:9], s[0:1], 96')
    a('v_lshrrev_b32 v1, 3, v0')
    a('v_and_b32 v2, 7, v0')
    a('v_mul_u32_u24 v3, 5376, v1')
    a('v_lshl_add_u32 v3, v2, 4, v3')
    a('v_lshlrev_b32 v4, 1, v1')
    a('s_lshl_b32 s3, s2, 7')
    a('s_waitcnt lgkmcnt(0)')
    srd(a, 12, 4, 896)
    srd(a, 16, 6, 448 * 5376)
    srd(a, 20, 8, 10752)
    for t in range(14):
        a(f'buffer_load_ushort v{100+t}, v4, s[12:15], 0 offen offset:{t*64}')
    for t in range(14):
        a(f'buffer_load_dwordx4 {vr(16+4*t,4)}, v3, s[16:19], s3 offen')
        if t < 13: a('s_add_u32 s3, s3, 172032')
    for e in range(8): a(f'v_mov_b32 v{8+e}, 0')
    a(f's_mov_b32 s24, {LOG2E}')
    a('s_waitcnt vmcnt(14)')
    for t in range(14):
        x = 100 + t
        a(f'v_lshlrev_b32 v{x}, 16, v{x}')
    for t in range(14):
        x = 100 + t; y = 120 + t
        a(f'v_mul_f32 v{y}, s24, v{x}')
    for t in range(14):
        y = 120 + t
        a(f'v_exp_f32 v{y}, -v{y}')
    for t in range(14):
        y = 120 + t
        a(f'v_add_f32 v{y}, 1.0, v{y}')
    for t in range(14):
        y = 120 + t
        a(f'v_rcp_f32 v{y}, v{y}')
    for t in range(14):
        x = 100 + t; y = 120 + t
        a(f'v_mul_f32 v{y}, v{x}, v{y}')
    for t in range(14):
        y = 120 + t
        a(f'v_cvt_pk_bf16_f32 v{y}, 0, v{y}')
    for t in range(14):
        a(f's_waitcnt vmcnt({13-t})')
        for d in range(4):
            w = 16 + 4*t + d
            a(f'v_lshlrev_b32 v5, 16, v{w}')
            a(f'v_and_b32 v6, 0xffff0000, v{w}')
            a(f'v_fmac_f32 v{8+2*d}, v{120+t}, v5')
            a(f'v_fmac_f32 v{9+2*d}, v{120+t}, v6')
    a('v_lshlrev_b32 v5, 8, v1')
    a('v_lshl_add_u32 v5, v2, 5, v5')
    a('ds_write_b128 v5, v[8:11]')
    a('ds_write_b128 v5, v[12:15] offset:16')
    a('v_lshrrev_b32 v6, 6, v0')
    a('s_waitcnt lgkmcnt(0)')
    a('v_readfirstlane_b32 s25, v6')
    a('s_barrier')
    a('s_cmp_lg_u32 s25, 0')
    a('s_cbranch_scc1 K1_end')
    a('v_lshlrev_b32 v5, 2, v0')
    for r in range(32):
        a(f'ds_read_b32 v{16+r}, v5 offset:{r*256}')
        if r == 14: pass
    a('s_waitcnt lgkmcnt(0)')
    for st in (16, 8, 4, 2, 1):
        for r in range(st):
            a(f'v_add_f32 v{16+r}, v{16+r}, v{16+r+st}')
    a('v_cvt_pk_bf16_f32 v16, 0, v16')
    a('s_lshl_b32 s26, s2, 6')
    a('v_add_u32 v7, s26, v0')
    a('v_add_f32 v17, 1.0, v16')
    a('v_cvt_pk_bf16_f32 v17, 0, v17')
    a('v_subrev_u32 v18, 448, v7')
    a('v_subrev_u32 v19, 1792, v7')
    a('v_min_u32 v18, v18, v19')
    a('v_cmp_gt_u32 vcc, 448, v18')
    a('v_lshlrev_b32 v7, 2, v7')
    a('s_nop 0')
    a('v_cndmask_b32 v16, v16, v17, vcc')
    a('buffer_store_dword v16, v7, s[20:23], 0 offen')
    a('s_waitcnt vmcnt(0)') if asmlib.PROF else None
    a.items += pf.stamp()
    pf.store(a, 8, 25, 28, 30, 'K1_end')
    a.label('K1_end')
    a('s_endpgm')
    probs = check_hazards(a.ins(), 'k1') + check_waits(a.ins(), 'k1')
    for p in probs: print(p)
    return kernel_text('k1_mod_kernel', a.text(), vgpr=136, sgpr=80, accum=136), ('k1_mod_kernel', 42, 256, 8192)
```

```python
from asmlib import *
import asmlib
import math, struct

def f2u(x): return struct.unpack('<I', struct.pack('<f', x))[0]

WS_MOD = 0
PREFETCH = True
L2PF = True
PARAM = 158720
sFLG = 92
WS_PART = 0x100000
WS_DBG = 0x2000000
CSCALE = math.log2(math.e) / 16.0
U0 = 72.0
THR = 0x71800000

KBUF = [0, 33792]
VBUF = [67584, 102400]
WQSLOT = [33792, 67584, 0]
HBUF = 101376
QBUF = 67584
XAREA = 67584
STAT = 137216
WOSLOT = [0, 32768, 67584, 100352]
LDS_BYTES = 163840

sX, sK, sV, sWQ, sWO, sMOD, sPART, sDBG = 16, 20, 24, 28, 32, 36, 40, 44
sW, sA, sKG, sG, sRB = 48, 49, 50, 51, 52
sT0, sT1, sT2, sT3 = 53, 54, 55, 56
sKoff, sKoff2, sVoff, sVoff2 = 57, 58, 59, 60
sKdst, sVdst = 61, 62
sCnt, sThr, sMask, sSite = 63, 64, 65, 66
sWqOff, sWoOff = 67, 68
sTS = 70

vLane, vC, vG4, vR, vCq = 1, 2, 3, 4, 5
vKrd, vVrdE, vVrdO, vDmaK, vDmaV = 8, 9, 10, 11, 12
vT0, vT1, vT2 = 13, 14, 15
vL, vLt, vPt, vFr, vNegm, vP, vS, vO = 16, 20, 24, 32, 48, 64, 96, 128
def S_(kt, lr): return vS + (kt * 4 + lr) * 4
def P_(b, lr): return vP + (b * 4 + lr) * 4
def NEGM(lr): return vNegm + lr * 4
def OK_(dt, lr): return vO + (dt * 2 + lr) * 4
def OG_(dt, lr): return (dt * 2 + (lr - 2)) * 4
def Q_(lr, ds): return 128 + (lr * 8 + ds) * 4
def FR(f): return vFr + (f & 3) * 4
MF = 'v_mfma_f32_16x16x32_bf16'

def oreg(dt, lr):
    return vr(OK_(dt, lr), 4) if lr < 2 else ar(OG_(dt, lr), 4)

def allreduce_g4(a, v, t, op):
    a(f'v_mov_b32 v{t}, v{v}')
    a('s_nop 1')
    a(f'v_permlane16_swap_b32 v{v}, v{t}')
    a('s_nop 1')
    a(f'{op} v{v}, v{v}, v{t}')
    a(f'v_mov_b32 v{t}, v{v}')
    a('s_nop 1')
    a(f'v_permlane32_swap_b32 v{v}, v{t}')
    a('s_nop 1')
    a(f'{op} v{v}, v{v}, v{t}')

def gen_k2(dbg=None, stop=None):
    a = Asm()
    st = State()
    def flush(items):
        a.items.extend(resolve_linear(items, st))
    def L(text):
        x = Asm(); x(text); return x.items
    pro = Asm()
    p = pro
    p('s_cmp_ge_u32 s2, 256')
    p('s_cbranch_scc1 K2_end')
    pf = Prof(1, 72, 18)
    pf2 = Prof(1, 72, 18); pf2.cnt = 13
    p.items += pf.stamp()
    p('s_load_dwordx4 s[4:7], s[0:1], 0')
    p('s_load_dwordx4 s[8:11], s[0:1], 16')
    p('s_load_dwordx2 s[12:13], s[0:1], 32')
    p('s_load_dwordx2 s[14:15], s[0:1], 96')
    p('s_load_dwordx4 s[96:99], s[0:1], 64')
    p('s_load_dwordx2 s[100:101], s[0:1], 88')
    p(f'v_and_b32 v{vLane}, 63, v0')
    p(f'v_lshrrev_b32 v{vT0}, 6, v0')
    p(f'v_and_b32 v{vC}, 15, v0')
    p(f'v_readfirstlane_b32 s{sW}, v{vT0}')
    p(f'v_lshrrev_b32 v{vG4}, 4, v{vLane}')
    p(f'v_bfe_u32 v{vR}, v0, 2, 2')
    p(f'v_and_b32 v{vCq}, 3, v0')
    p(f's_and_b32 s{sG}, s2, 7')
    p(f's_lshr_b32 s{sRB}, s2, 3')
    p(f's_and_b32 s{sA}, s{sW}, 1')
    p(f's_lshr_b32 s{sKG}, s{sW}, 1')
    p(f's_mov_b32 s{sMask}, 0xffff0000')
    p(f's_mov_b32 s{sThr}, {THR}')
    p('s_waitcnt lgkmcnt(0)')
    srd(p, sX, 4, 1835008)
    p(f's_lshl_b32 s{sT0}, s{sG}, 20')
    p(f's_add_u32 s6, s6, s{sT0}'); p('s_addc_u32 s7, s7, 0')
    p(f's_add_u32 s8, s8, s{sT0}'); p('s_addc_u32 s9, s9, 0')
    srd(p, sK, 6, 1 << 20); srd(p, sV, 8, 1 << 20)
    srd(p, sWQ, 10, 448 * 8192)
    p(f's_mul_i32 s{sT0}, s{sG}, 458752')
    p(f's_add_u32 s12, s12, s{sT0}'); p('s_addc_u32 s13, s13, 0')
    srd(p, sWO, 12, 458752)
    srd(p, sMOD, 14, 10752)
    p(f's_lshl_b32 s{sT0}, s{sG}, 5'); p(f's_add_u32 s{sT0}, s{sT0}, s{sRB}')
    p(f's_mul_i32 s{sT0}, s{sT0}, 57344'); p(f's_add_u32 s{sT0}, s{sT0}, {WS_PART}')
    p(f's_add_u32 s4, s14, s{sT0}'); p('s_addc_u32 s5, s15, 0')
    srd(p, sPART, 4, 57344)
    if dbg:
        p(f's_add_u32 s4, s14, {WS_DBG}'); p('s_addc_u32 s5, s15, 0')
        srd(p, sDBG, 4, 0x4000000)
    srd(p, sFLG, 100, 256)
    sC, sWM = 4, 8
    WR, CR = 184, 240
    p('s_cmp_ge_u32 s2, 42'); p('s_cbranch_scc1 K2_noprod1')
    srd(p, sC, 96, 896); srd(p, sWM, 98, 448 * 5376)
    p('v_lshrrev_b32 v8, 3, v0')
    p('v_and_b32 v9, 7, v0')
    p('v_mul_u32_u24 v10, 5376, v8')
    p('v_lshl_add_u32 v10, v9, 4, v10')
    p('v_lshlrev_b32 v11, 1, v8')
    p(f's_lshl_b32 s{sT0}, s2, 7')
    flush(p.items); p = Asm()
    for t in range(14):
        p(f'buffer_load_ushort v{CR+t}, v11, s[{sC}:{sC+3}], 0 offen offset:{t*64}')
    for t in range(14):
        p(f'buffer_load_dwordx4 {vr(WR+4*t,4)}, v10, s[{sWM}:{sWM+3}], s{sT0} offen')
        if t < 13: p(f's_add_u32 s{sT0}, s{sT0}, 172032')
    prod_loads = p.items
    a.items.extend(prod_loads)
    a.label('K2_noprod1')
    p = Asm()
    p(f's_lshl_b32 s{sT0}, s{sRB}, 6'); p(f's_lshl_b32 s{sT1}, s{sW}, 4'); p(f's_add_u32 s{sT0}, s{sT0}, s{sT1}')
    p(f'v_add_u32 v{vT0}, s{sT0}, v{vC}')
    p(f'v_mul_u32_u24 v{vT0}, 896, v{vT0}')
    p(f'v_lshl_add_u32 v{vT0}, v{vG4}, 4, v{vT0}')
    XR = 128
    for ks in range(14):
        p(f'buffer_load_dwordx4 {vr(XR+4*ks,4)}, v{vT0}, s[{sX}:{sX+3}], 0 offen offset:{ks*64}')
    flush(p.items)
    p = Asm()
    p('s_cmp_ge_u32 s2, 42'); p('s_cbranch_scc1 K2_noprod2')
    p(f's_mov_b32 s{sT0}, {0x3fb8aa3b}')
    p('s_waitcnt vmcnt(28)')
    p.items += pf2.stamp()
    for t in range(14): p(f'v_lshlrev_b32 v{CR+t}, 16, v{CR+t}')
    SI = 100
    for t in range(14): p(f'v_mul_f32 v{SI+t}, s{sT0}, v{CR+t}')
    for t in range(14): p(f'v_exp_f32 v{SI+t}, -v{SI+t}')
    for t in range(14): p(f'v_add_f32 v{SI+t}, 1.0, v{SI+t}')
    for t in range(14): p(f'v_rcp_f32 v{SI+t}, v{SI+t}')
    for t in range(14): p(f'v_mul_f32 v{SI+t}, v{CR+t}, v{SI+t}')
    for t in range(14): p(f'v_cvt_pk_bf16_f32 v{SI+t}, 0, v{SI+t}')
    for e in range(8): p(f'v_mov_b32 v{16+e}, 0')
    for t in range(14):
        p(f's_waitcnt vmcnt({14 + 13 - t})')
        for d in range(4):
            w = WR + 4*t + d
            p(f'v_lshlrev_b32 v12, 16, v{w}')
            p(f'v_and_b32 v13, s{sMask}, v{w}')
            p(f'v_fmac_f32 v{16+2*d}, v{SI+t}, v12')
            p(f'v_fmac_f32 v{17+2*d}, v{SI+t}, v13')
    p.items += pf2.stamp()
    p('v_lshrrev_b32 v8, 3, v0'); p('v_and_b32 v9, 7, v0')
    p('v_lshlrev_b32 v12, 8, v8'); p('v_lshl_add_u32 v12, v9, 5, v12')
    p(f'v_add_u32 v12, {HBUF}, v12')
    p('ds_write_b128 v12, v[16:19]'); p('ds_write_b128 v12, v[20:23] offset:16')
    p('s_waitcnt lgkmcnt(0)')
    p('s_barrier')
    p(f's_cmp_lg_u32 s{sW}, 0'); p('s_cbranch_scc1 K2_noprod2')
    p(f'v_lshlrev_b32 v12, 2, v{vLane}'); p(f'v_add_u32 v12, {HBUF}, v12')
    for r in range(32): p(f'ds_read_b32 v{16+r}, v12 offset:{r*256}')
    p('s_waitcnt lgkmcnt(0)')
    for stp in (16, 8, 4, 2, 1):
        for r in range(stp): p(f'v_add_f32 v{16+r}, v{16+r}, v{16+r+stp}')
    p('v_cvt_pk_bf16_f32 v16, 0, v16')
    p(f's_lshl_b32 s{sT0}, s2, 6')
    p(f'v_add_u32 v12, s{sT0}, v{vLane}')
    p('v_add_f32 v17, 1.0, v16'); p('v_cvt_pk_bf16_f32 v17, 0, v17')
    p('v_subrev_u32 v18, 448, v12'); p('v_subrev_u32 v19, 1792, v12'); p('v_min_u32 v18, v18, v19')
    p('v_cmp_gt_u32 vcc, 448, v18')
    p('v_lshlrev_b32 v12, 2, v12')
    p('s_nop 0')
    p('v_cndmask_b32 v16, v16, v17, vcc')
    p(f'buffer_store_dword v16, v12, s[{sMOD}:{sMOD+3}], 0 offen sc0 sc1')
    p('s_cmp_ge_u32 s2, 14'); p('s_cbranch_scc1 K2_noprod2')
    p('s_waitcnt vmcnt(0)')
    p.items += pf2.stamp()
    p('v_mov_b32 v12, 0'); p('v_mov_b32 v13, 1')
    p(f'v_cmp_eq_u32 vcc, 0, v{vLane}')
    p('s_and_saveexec_b64 s[4:5], vcc')
    p(f'buffer_atomic_add v13, v12, s[{sFLG}:{sFLG+3}], 0 offen sc1')
    p('s_mov_b64 exec, s[4:5]')
    p.label('K2_noprod2')
    a.items.extend(p.items)
    p = Asm()
    vWqD = 120
    p(f'v_lshlrev_b32 v{vWqD}, 4, v{vLane}')
    for jj in range(1, 8):
        p(f'v_add_u32 v{vWqD+jj}, {jj*8192}, v{vWqD}')
    p(f's_lshl_b32 s{sWqOff}, s{sW}, 16'); p(f's_lshl_b32 s{sT0}, s{sG}, 10'); p(f's_add_u32 s{sWqOff}, s{sWqOff}, s{sT0}')
    p(f's_mul_i32 s{sT3}, s{sW}, {8*1056}')
    def wq_dma(ks, jj, vWqD=vWqD):
        r = []
        r.append(Ins(f's_add_u32 m0, s{sT3}, {WQSLOT[ks%3] + jj*1056}'))
        if jj == 0 and ks > 0:
            r.append(Ins(f's_add_u32 s{sWqOff}, s{sWqOff}, {32*8192}'))
        else:
            r.append(Ins('s_nop 0'))
        r.append(TIns(f'buffer_load_dwordx4 v{vWqD+jj}, s[{sWQ}:{sWQ+3}], s{sWqOff} offen lds', f'wq{ks}'))
        return r
    for ks in range(3):
        for jj in range(8): p.items += wq_dma(ks, jj)
    flush(p.items)
    if L2PF:
        p = Asm()
        p(f's_cmp_eq_u32 s{sW}, 3'); p('s_cbranch_scc0 K2_pfend')
        for k in range(2):
            p(f'v_add_u32 v9, {64*k}, v{vLane}')
            p('v_min_u32 v9, 111, v9')
            p('v_lshrrev_b32 v10, 3, v9'); p('v_lshlrev_b32 v10, 13, v10')
            p('v_and_b32 v11, 7, v9'); p('v_lshl_add_u32 v10, v11, 7, v10')
            p(f's_mul_i32 s{sT0}, s{sRB}, {14*8192}'); p(f's_lshl_b32 s{sT1}, s{sG}, 10'); p(f's_add_u32 s{sT0}, s{sT0}, s{sT1}')
            p(f'buffer_load_dword a{2+k}, v10, s[{sWQ}:{sWQ+3}], s{sT0} offen')
        p.label('K2_pfend')
        if PREFETCH:
            p(f's_cmp_eq_u32 s{sW}, 2'); p('s_cbranch_scc0 K2_pfend2')
            p('s_getpc_b64 s[70:71]')
            p.items.append('K2_pc:')
            p('s_sub_u32 s70, s70, K2_pc-code_begin'); p('s_subb_u32 s71, s71, 0')
            p(f'v_and_b32 v9, 15, v{vLane}'); p('v_lshlrev_b32 v9, 7, v9')
            p(f's_lshl_b32 s{sT0}, s{sRB}, 11')
            p(f'v_add_u32 v9, s{sT0}, v9')
            p('v_min_u32 v9, code_end-code_begin-4, v9')
            p('global_load_dword a2, v9, s[70:71]')
            p.label('K2_pfend2')
        a.items.extend(p.items)
    p = Asm()
    XF = 16
    for ks in range(14):
        for d in range(4):
            r = XR + 4*ks + d
            p(f'v_lshlrev_b32 v{XF+8*ks+2*d}, 16, v{r}')
            p(f'v_and_b32 v{XF+8*ks+2*d+1}, s{sMask}, v{r}')
            if XF+8*ks+2*d+1 >= vWqD - 1 and False: pass
    p(f'v_pk_add_f32 v[8:9], v[{XF}:{XF+1}], v[{XF+2}:{XF+3}]')
    p(f'v_pk_add_f32 v[10:11], v[{XF+4}:{XF+5}], v[{XF+6}:{XF+7}]')
    for i in range(4, 56):
        acc = 8 + 2 * (i & 1)
        p(f'v_pk_add_f32 v[{acc}:{acc+1}], v[{acc}:{acc+1}], v[{XF+2*i}:{XF+2*i+1}]')
    p('v_pk_add_f32 v[8:9], v[8:9], v[10:11]')
    p('v_add_f32 v8, v8, v9')
    allreduce_g4(p, 8, 9, 'v_add_f32')
    p(f'v_mul_f32 v8, {f2u(1.0/448):#x}, v8')
    for i in range(56):
        p(f'v_pk_add_f32 v[{XF+2*i}:{XF+2*i+1}], v[{XF+2*i}:{XF+2*i+1}], v[8:9] op_sel_hi:[1,0] neg_lo:[0,1] neg_hi:[0,1]')
    p(f'v_pk_mul_f32 v[10:11], v[{XF}:{XF+1}], v[{XF}:{XF+1}]')
    p(f'v_pk_mul_f32 v[12:13], v[{XF+2}:{XF+3}], v[{XF+2}:{XF+3}]')
    for i in range(2, 56):
        acc = 10 + 2 * (i & 1)
        p(f'v_pk_fma_f32 v[{acc}:{acc+1}], v[{XF+2*i}:{XF+2*i+1}], v[{XF+2*i}:{XF+2*i+1}], v[{acc}:{acc+1}]')
    p('v_pk_add_f32 v[10:11], v[10:11], v[12:13]')
    p('v_add_f32 v10, v10, v11')
    allreduce_g4(p, 10, 11, 'v_add_f32')
    p(f'v_mov_b32 v11, {f2u(1e-5):#x}')
    p(f'v_fmac_f32 v11, {f2u(1.0/448):#x}, v10')
    p('v_rsq_f32 v10, v11')
    p('s_nop 0')
    for i in range(56):
        p(f'v_pk_mul_f32 v[{XF+2*i}:{XF+2*i+1}], v[{XF+2*i}:{XF+2*i+1}], v[10:11] op_sel_hi:[1,0]')
    flush(p.items + pf.stamp())
    p = Asm()
    p(f's_cmp_lg_u32 s{sW}, 0'); p('s_cbranch_scc1 K2_gotpar')
    p('v_mov_b32 v12, 0')
    p.label('K2_poll')
    p(f'buffer_load_dword v13, v12, s[{sFLG}:{sFLG+3}], 0 offen sc0 sc1')
    p('s_waitcnt vmcnt(0)')
    p(f'v_readfirstlane_b32 s{sT0}, v13')
    p('s_nop 3')
    p(f's_cmp_ge_u32 s{sT0}, 14'); p('s_cbranch_scc1 K2_polled')
    p('s_sleep 4')
    p('s_branch K2_poll')
    p.label('K2_polled')
    p.items += pf2.stamp()
    p(f'v_lshlrev_b32 v12, 4, v{vLane}')
    for k in range(4):
        p(f'buffer_load_dwordx4 {vr(128+4*k,4)}, v12, s[{sMOD}:{sMOD+3}], 0 offen offset:{k*1024} sc0 sc1')
    p(f'v_add_u32 v13, {PARAM}, v12')
    p('s_waitcnt vmcnt(0)')
    for k in range(4):
        p(f'ds_write_b128 v13, {vr(128+4*k,4)} offset:{k*1024}')
    p('s_waitcnt lgkmcnt(0)')
    p.label('K2_gotpar')
    p('s_barrier')
    a.items.extend(p.items)
    p = Asm()
    p(f's_mul_i32 s{sT0}, s{sW}, 14336'); p(f's_add_u32 s{sT0}, s{sT0}, {HBUF}')
    p(f'v_and_b32 v12, 1, v{vG4}'); p('v_lshlrev_b32 v12, 9, v12')
    p(f'v_lshl_add_u32 v12, v{vC}, 4, v12')
    p(f'v_lshrrev_b32 v13, 1, v{vG4}'); p('v_lshl_add_u32 v12, v13, 3, v12')
    p(f'v_add_u32 v12, s{sT0}, v12')
    p(f'v_lshlrev_b32 v13, 5, v{vG4}'); p(f'v_add_u32 v13, {PARAM}, v13')
    PS = [128, 144, 160, 176]
    def par_read(ks):
        b = PS[ks & 3]
        return [Ins(f'ds_read_b128 {vr(b,4)}, v13 offset:{1792+ks*128}'), Ins(f'ds_read_b128 {vr(b+4,4)}, v13 offset:{1792+ks*128+16}'),
                Ins(f'ds_read_b128 {vr(b+8,4)}, v13 offset:{ks*128}'), Ins(f'ds_read_b128 {vr(b+12,4)}, v13 offset:{ks*128+16}')]
    for ks in range(3): p.items += par_read(ks)
    for ks in range(14):
        if ks + 3 < 14: p.items += par_read(ks + 3)
        b = PS[ks & 3]
        for i in range(4):
            x = XF + 8*ks + 2*i
            p(f'v_pk_fma_f32 v[{x}:{x+1}], v[{x}:{x+1}], v[{b+2*i}:{b+2*i+1}], v[{b+8+2*i}:{b+8+2*i+1}]')
        for i in range(4):
            x = XF + 8*ks + 2*i
            p(f'v_cvt_pk_bf16_f32 v{XF+8*ks+i}, v{x}, v{x+1}')
        p(f'ds_write_b64 v12, v[{XF+8*ks}:{XF+8*ks+1}] offset:{ks*1024}')
        p(f'ds_write_b64 v12, v[{XF+8*ks+2}:{XF+8*ks+3}] offset:{ks*1024+256}')
    flush(p.items + pf.stamp())

    q = Asm()
    q(f'v_lshl_add_u32 v13, v{vG4}, 2, v{vR}')
    q('v_mul_u32_u24 v13, 1056, v13')
    q(f'v_lshl_add_u32 v13, v{vCq}, 3, v13')
    q(f's_lshl_b32 s{sT0}, s{sA}, 9'); q(f's_lshl_b32 s{sT1}, s{sKG}, 8'); q(f's_add_u32 s{sT0}, s{sT0}, s{sT1}')
    q(f'v_add_u32 v13, s{sT0}, v13')
    for s3 in range(3):
        q(f'v_add_u32 v{8+s3}, {WQSLOT[s3]}, v13')
    q(f'v_lshlrev_b32 v11, 4, v{vLane}')
    vWqD2 = 96
    for jj in range(8):
        q(f'v_add_u32 v{vWqD2+jj}, {jj*8192}, v11')
    q(f'v_add_u32 v11, {HBUF}, v11')
    vDmaKq = 14
    q(f'v_lshrrev_b32 v15, 5, v{vLane}')
    q(f'v_and_b32 v{vDmaKq}, 31, v{vLane}')
    q(f'v_xor_b32 v{vDmaKq}, v{vDmaKq}, v15')
    q(f'v_lshlrev_b32 v{vDmaKq}, 4, v{vDmaKq}')
    q(f'v_lshl_add_u32 v{vDmaKq}, v15, 9, v{vDmaKq}')
    q(f's_lshl_b32 s{sKoff}, s{sW}, 13')
    q(f's_add_u32 s{sKoff2}, s{sKoff}, 4096')
    q(f's_mul_i32 s{sKdst}, s{sW}, {8*1056}')
    q(f's_mul_i32 s{sVdst}, s{sW}, {8*1088}')
    q.items.append(Ins('s_waitcnt lgkmcnt(0)'))
    q.items.append(('waitvm', 'wq0'))
    q('s_barrier')
    QACC = 128
    def qacc(e, rs): return QACC + (e * 4 + rs) * 4
    BF = [64, 80]
    def a_read(ks, e):
        base = 8 + (ks % 3)
        f = FR(e)
        return [Ins(f'ds_read_b64_tr_b16 v[{f}:{f+1}], v{base} offset:{e*32}'),
                Ins(f'ds_read_b64_tr_b16 v[{f+2}:{f+3}], v{base} offset:{16896 + e*32}')]
    def b_read(ks, rs):
        b = BF[ks & 1] + rs * 4
        return [Ins(f'ds_read_b128 {vr(b,4)}, v11 offset:{(rs*14+ks)*1024}')]
    def k_dma(blk_buf, j, first):
        r = []
        r.append(Ins(f's_add_u32 m0, s{sKdst}, {KBUF[blk_buf] + (4*1056 if j >= 4 else 0) + (j & 3) * 32}'))
        r.append(Ins('s_nop 0'))
        return r
    for e in range(3): q.items += a_read(0, e)
    for rs in range(4): q.items += b_read(0, rs)
    q.items += a_read(0, 3)
    flush(q.items)
    def kdma_item(buf, j, vreg, tag):
        so = sKoff2 if j >= 4 else sKoff
        return [Ins(f's_add_u32 m0, s{sKdst}, {KBUF[buf] + (4*1056 if j >= 4 else 0) + (j & 3) * 32}'),
                Ins('s_nop 0'),
                TIns(f'buffer_load_dwordx4 v{vreg}, s[{sK}:{sK+3}], s{so} offen offset:{(j&3)*1024} lds', tag)]
    for ks in range(14):
        s = Seg(32)
        for qq in range(32):
            e = qq >> 2; rs = qq & 3
            c = '0' if ks == 0 else vr(qacc(e, rs), 4)
            s.mf[qq] = f'{MF} {vr(qacc(e,rs),4)}, {vr(FR(e),4)}, {vr(BF[ks&1]+rs*4,4)}, {c}'
        for e in range(4, 8):
            for it in a_read(ks, e): s.put(4 * (e - 3), it)
        if ks + 1 < 14:
            for rs in range(4):
                for it in b_read(ks + 1, rs): s.put(2 + 4 * rs, it)
            s.post[23].append(Ins('s_waitcnt lgkmcnt(0)'))
            s.post[23].append(('waitvm', f'wq{ks+1}'))
            s.post[23].append(Ins('s_barrier'))
            for it in a_read(ks + 1, 0) + a_read(ks + 1, 1): s.post[23].append(it)
            for it in a_read(ks + 1, 2): s.put(27, it)
            for it in a_read(ks + 1, 3): s.put(31, it)
        else:
            s.post[23].append(Ins('s_waitcnt lgkmcnt(0)'))
            s.post[23].append(Ins('s_barrier'))
        nxt = ks + 2
        if ks >= 1:
            for jj in range(8):
                pos = jj * 3
                if nxt < 14: its = wq_dma(nxt, jj, vWqD2)
                elif nxt == 14: its = kdma_item(0, jj, vDmaKq, 'k0')
                elif nxt == 15: its = kdma_item(1, jj, vDmaKq, 'k1')
                for it in its: s.put(pos, it)
            if nxt == 14:
                s.put(23, f's_add_u32 s{sKoff}, s{sKoff}, 32768'); s.put(23, f's_add_u32 s{sKoff2}, s{sKoff2}, 32768')
            if nxt == 15:
                s.put(23, f's_add_u32 s{sKoff}, s{sKoff}, 32768'); s.put(23, f's_add_u32 s{sKoff2}, s{sKoff2}, 32768')
        flush(s.items())
    x = Asm()
    x.items += pf.stamp()
    x('s_nop 7')
    x(f'v_lshrrev_b32 v13, 1, v{vG4}')
    x('v_lshlrev_b32 v13, 8, v13')
    x(f'v_lshl_add_u32 v13, v{vC}, 4, v13')
    x(f'v_and_b32 v12, 1, v{vG4}')
    x('v_lshl_add_u32 v13, v12, 3, v13')
    x(f's_lshl_b32 s{sT0}, s{sA}, 15'); x(f's_lshl_b32 s{sT1}, s{sKG}, 12'); x(f's_add_u32 s{sT0}, s{sT0}, s{sT1}')
    x(f's_add_u32 s{sT0}, s{sT0}, {QBUF}')
    x(f'v_add_u32 v13, s{sT0}, v13')
    x(f's_mov_b32 s{sT0}, {f2u(CSCALE):#x}')
    tmp = 16
    n = 0
    for e in range(8):
        for rs in range(4):
            r = qacc(e, rs); t = tmp + (n % 8) * 2; n += 1
            for i in range(4): x(f'v_mul_f32 v{r+i}, s{sT0}, v{r+i}')
            x(f'v_cvt_pk_bf16_f32 v{t}, v{r}, v{r+1}')
            x(f'v_cvt_pk_bf16_f32 v{t+1}, v{r+2}, v{r+3}')
            x(f'ds_write_b64 v13, v[{t}:{t+1}] offset:{rs*8192 + (e>>1)*1024 + (e&1)*512}')
    x('s_waitcnt lgkmcnt(0)')
    x('s_barrier')
    x(f'v_lshlrev_b32 v13, 4, v{vLane}')
    x(f's_lshl_b32 s{sT0}, s{sA}, 15'); x(f's_add_u32 s{sT0}, s{sT0}, {QBUF}')
    x(f'v_add_u32 v13, s{sT0}, v13')
    x(f's_lshl_b32 s{sT1}, s{sKG}, 14')
    x(f'v_add_u32 v12, s{sT1}, v13')
    x(f'v_subrev_u32 v13, s{sT1}, v13')
    x('v_add_u32 v13, 16384, v13')
    for lr in range(4):
        for ds in range(8):
            base = 12 if lr < 2 else 13
            x(f'ds_read_b128 {ar(Q_(lr,ds),4)}, v{base} offset:{(lr&1)*8192 + ds*1024}')
    x('s_waitcnt lgkmcnt(0)')
    x.items.append(('waitvm', 'k0'))
    x('s_barrier')
    x(f'v_mov_b32 v{vDmaK}, v{vDmaKq}')
    x(f'v_lshrrev_b32 v15, 5, v{vLane}')
    x(f'v_lshlrev_b32 v14, 1, v15')
    x(f'v_and_b32 v{vDmaV}, 31, v{vLane}')
    x(f'v_xor_b32 v{vDmaV}, v{vDmaV}, v14')
    x(f'v_lshlrev_b32 v{vDmaV}, 4, v{vDmaV}')
    x(f'v_lshl_add_u32 v{vDmaV}, v15, 9, v{vDmaV}')
    x(f'v_lshrrev_b32 v13, 1, v{vC}')
    x('v_mul_u32_u24 v13, 1056, v13')
    x(f'v_and_b32 v14, 1, v{vC}')
    x('v_lshl_add_u32 v13, v14, 9, v13')
    x(f'v_xor_b32 v14, v14, v{vG4}')
    x('v_lshl_add_u32 v13, v14, 4, v13')
    x(f's_mul_i32 s{sT0}, s{sKG}, {16*1056}')
    x(f'v_add_u32 v{vKrd}, s{sT0}, v13')
    x(f'v_lshrrev_b32 v13, 1, v{vR}')
    x(f'v_lshl_add_u32 v13, v{vG4}, 1, v13')
    x('v_mul_u32_u24 v13, 1088, v13')
    x(f'v_and_b32 v14, 1, v{vR}')
    x('v_lshl_add_u32 v13, v14, 9, v13')
    x(f'v_lshl_add_u32 v13, v{vCq}, 3, v13')
    x(f's_mul_i32 s{sT0}, s{sKG}, {16*1088}'); x(f's_add_u32 s{sT0}, s{sT0}, {VBUF[0]}')
    x(f'v_add_u32 v13, s{sT0}, v13')
    x('v_lshlrev_b32 v14, 5, v14')
    x(f'v_add_u32 v{vVrdE}, v13, v14')
    x(f'v_sub_u32 v{vVrdO}, v13, v14')
    x(f's_lshl_b32 s{sVoff}, s{sW}, 13')
    x(f's_add_u32 s{sVoff2}, s{sVoff}, 4096')
    flush(x.items)
    if dbg == 'q':
        d = Asm()
        d(f's_lshl_b32 s{sT0}, s2, 2'); d(f's_add_u32 s{sT0}, s{sT0}, s{sW}'); d(f's_lshl_b32 s{sT0}, s{sT0}, 15')
        d(f'v_lshlrev_b32 v13, 4, v{vLane}')
        for i in range(32):
            d(f'buffer_store_dwordx4 {ar(128+4*i,4)}, v13, s[{sDBG}:{sDBG+3}], s{sT0} offen')
            d(f's_add_u32 s{sT0}, s{sT0}, 1024')
        d('s_waitcnt vmcnt(0)')
        flush(d.items)
        a.label('K2_end'); a('s_endpgm')
        return finish(a)

    def kdma(buf, j, tag):
        return kdma_item(buf, j, vDmaK, tag)
    def vdma(buf, j, tag):
        so = sVoff2 if j >= 4 else sVoff
        return [Ins(f's_add_u32 m0, s{sVdst}, {VBUF[buf] + (4*1088 if j >= 4 else 0) + (j & 3) * 64}'),
                Ins('s_nop 0'),
                TIns(f'buffer_load_dwordx4 v{vDmaV}, s[{sV}:{sV+3}], s{so} offen offset:{(j&3)*1024} lds', tag)]
    def adv(r1, r2):
        return [Ins(f's_add_u32 s{r1}, s{r1}, 32768'), Ins(f's_add_u32 s{r2}, s{r2}, 32768')]
    def k_read(buf, f):
        return [Ins(f'ds_read_b128 {vr(FR(f),4)}, v{vKrd} offset:{KBUF[buf] + (f>>3)*8*1056 + (f&7)*64}')]
    def v_read(buf, dt, f):
        base = vVrdE if (dt & 1) == 0 else vVrdO
        r = FR(f); o = VBUF[buf] - VBUF[0] + dt * 32
        return [Ins(f'ds_read_b64_tr_b16 v[{r}:{r+1}], v{base} offset:{o}'),
                Ins(f'ds_read_b64_tr_b16 v[{r+2}:{r+3}], v{base} offset:{o + 8*1088}')]
    def qk_mf(q, czero=False):
        kt = q >> 5; ds = (q >> 2) & 7; lr = q & 3
        c = ('0' if czero else vr(NEGM(lr), 4)) if ds == 0 else vr(S_(kt, lr), 4)
        return f'{MF} {vr(S_(kt,lr),4)}, {vr(FR(q>>2),4)}, {ar(Q_(lr,ds),4)}, {c}'
    def pv_mf(dt, lr, f, pb):
        o = oreg(dt, lr)
        return f'{MF} {o}, {vr(FR(f),4)}, {vr(P_(pb,lr),4)}, {o}'

    z = Asm()
    z.items += pf.stamp()
    for j in range(8): z.items += vdma(0, j, 'v0')
    z.items += adv(sVoff, sVoff2)
    for f in range(4): z.items += k_read(0, f)
    flush(z.items)
    s = Seg(64)
    for q in range(64): s.mf[q] = qk_mf(q, czero=True)
    for f in range(4, 16):
        for it in k_read(0, f): s.put(4 * f - 13, it)
    zi = [f'v_mov_b32 v{vO+i}, 0' for i in range(128)] + [f'v_accvgpr_write_b32 a{i}, 0' for i in range(128)]
    for i, t in enumerate(zi): s.put(i // 4, t)
    s.post[55].append(Ins('s_waitcnt lgkmcnt(0)'))
    s.post[55].append(('waitvm', 'k1'))
    s.post[55].append(Ins('s_barrier'))
    for j in range(8):
        for it in kdma(0, j, 'k0'): s.post[56 + j].append(it)
    s.post[63] += adv(sKoff, sKoff2)
    flush(s.items())
    i0 = Asm()
    i0('s_nop 7')
    for f in range(4): i0.items += k_read(1, f)
    def rowmax(x, lr, dst):
        s0 = S_(0, lr); s1 = S_(1, lr)
        x(f'v_max3_f32 v{dst}, v{s0}, v{s0+1}, v{s0+2}')
        x(f'v_max3_f32 v{dst}, v{dst}, v{s0+3}, v{s1}')
        x(f'v_max3_f32 v{dst}, v{dst}, v{s1+1}, v{s1+2}')
        x(f'v_max_f32 v{dst}, v{dst}, v{s1+3}')
        allreduce_g4(x, dst, vT2, 'v_max_f32')
    def softmax_plain(x, pb):
        for lr in range(4):
            for kt in range(2):
                sb = S_(kt, lr); e = vPt + 4 * kt
                for i in range(4): x(f'v_exp_f32 v{e+i}, v{sb+i}')
            x('s_nop 0')
            e = vPt
            x(f'v_add_f32 v{vLt+lr}, v{e}, v{e+1}')
            for i in range(2, 8): x(f'v_add_f32 v{vLt+lr}, v{vLt+lr}, v{e+i}')
            for i in range(4): x(f'v_cvt_pk_bf16_f32 v{P_(pb,lr)+i}, v{e+2*i}, v{e+2*i+1}')
    i0(f's_mov_b32 s{sT0}, {f2u(U0):#x}')
    for lr in range(4):
        rowmax(i0, lr, vT0)
        i0(f'v_add_f32 v{vT0}, s{sT0}, v{vT0}')
        for i in range(4): i0(f'v_sub_f32 v{NEGM(lr)+i}, 0, v{vT0}')
        for kt in range(2):
            for i in range(4): i0(f'v_sub_f32 v{S_(kt,lr)+i}, v{S_(kt,lr)+i}, v{vT0}')
        i0(f'v_mov_b32 v{vL+lr}, 0')
    softmax_plain(i0, 0)
    i0(f's_mov_b32 s{sCnt}, 15')
    flush(i0.items)

    rare_sites = []
    def iteration(b, last=False):
        s = Seg(128)
        kb = 1 - b
        for q in range(64): s.mf[q] = qk_mf(q)
        for q in range(64, 128): s.mf[q] = pv_mf((q - 64) >> 2, q & 3, q >> 2, b)
        for lr in range(4): s.put(lr, f'v_add_f32 v{vL+lr}, v{vL+lr}, v{vLt+lr}')
        for f in range(4, 16):
            for it in k_read(kb, f): s.put(4 * f - 13, it)
        s.post[55].append(Ins('s_waitcnt lgkmcnt(0)'))
        s.post[55].append(('waitvm', [f'v{b}'] + (['k0'] if last else [])))
        s.post[55].append(Ins('s_barrier'))
        for f in (16, 17):
            for it in v_read(b, f - 16, f): s.put(55, it)
        for f in range(18, 32):
            for it in v_read(b, f - 16, f): s.put(4 * f - 13, it)
        s.post[119].append(Ins('s_waitcnt lgkmcnt(0)'))
        if not last:
            s.post[119].append(('waitvm', f'k{b}'))
            s.post[119].append(Ins('s_barrier'))
            for f in (0, 1):
                for it in k_read(b, f): s.put(119, it)
            for it in k_read(b, 2): s.put(123, it)
            for it in k_read(b, 3): s.put(127, it)
        else:
            s.post[119].append(('waitvm', 'v1'))
            s.post[119].append(Ins('s_barrier'))
            for f in (0, 1):
                for it in v_read(1, f, f): s.put(119, it)
            for it in v_read(1, 2, 2): s.put(123, it)
            for it in v_read(1, 3, 3): s.put(127, it)
        for j in range(8):
            for it in vdma(1 - b, j, f'v{1-b}'): s.put(4 + 6 * j, it, 3)
        for it in adv(sVoff, sVoff2): s.put(53, it, 2)
        if not last:
            for j in range(8):
                for it in kdma(kb, j, f'k{kb}'): s.put(58 + 7 * j, it, 3)
            for it in adv(sKoff, sKoff2): s.put(117, it, 2)
        else:
            for j in range(16):
                for it in wo_dma(j >> 3, j & 7): s.put(57 + 4 * j if 57 + 4*j < 119 else 118, it, 3)
        sm = []
        for kt in range(2):
            for lr in range(4):
                sb = S_(kt, lr); e = vPt + 4 * (lr & 1); lt = vLt + lr; pb = P_(1 - b, lr) + 2 * kt
                early = (34 if kt == 0 else 66)
                sm.append((early, 8, f'v_exp_f32 v{e}, v{sb}'))
                sm.append((early, 8, f'v_exp_f32 v{e+1}, v{sb+1}'))
                sm.append((early, 8, f'v_exp_f32 v{e+2}, v{sb+2}'))
                if kt == 0: sm.append((early, 4, f'v_add_f32 v{lt}, v{e}, v{e+1}'))
                else: sm.append((early, 4, f'v_add_f32 v{lt}, v{lt}, v{e}'))
                sm.append((early, 4, f'v_cvt_pk_bf16_f32 v{pb}, v{e}, v{e+1}'))
                sm.append((early, 8, f'v_exp_f32 v{e+3}, v{sb+3}'))
                if kt == 1: sm.append((early, 4, f'v_add_f32 v{lt}, v{lt}, v{e+1}'))
                sm.append((early, 4, f'v_add_f32 v{lt}, v{lt}, v{e+2}'))
                sm.append((early, 0, None))
                sm.append((early, 4, f'v_add_f32 v{lt}, v{lt}, v{e+3}'))
                sm.append((early, 4, f'v_cvt_pk_bf16_f32 v{pb+1}, v{e+2}, v{e+3}'))
        q = 0
        for early, c, t in sm:
            q = max(q, early)
            if t is None:
                q += 1; continue
            while q < 127 and s.cost[q] + c > 8: q += 1
            q = min(q, 127)
            s.put(q, t, c)
        iteration.last_q = q
        s.put(127, f'v_max3_f32 v{vT0}, v{vLt}, v{vLt+1}, v{vLt+2}')
        s.put(127, f'v_max_f32 v{vT0}, v{vT0}, v{vLt+3}')
        s.put(127, f'v_cmp_lt_f32 vcc, s{sThr}, v{vT0}')
        site = len(rare_sites); rare_sites.append(1 - b)
        s.put(127, f's_mov_b32 s{sSite}, {site}')
        s.put(127, 's_nop 0')
        s.put(127, f's_cbranch_vccnz K2_rare{1-b}')
        its = s.items()
        its.append(f'K2_ret{site}:')
        return its
    vDmaWo = vT1
    def wo_dma(tau, jj):
        nb = tau >> 1; hf = tau & 1
        r = [Ins(f's_add_u32 m0, s{sT3}, {WOSLOT[tau & 3] + jj * 1024}'),
             Ins(f's_add_u32 s{sT2}, s{sWoOff}, {(256*hf + 8*jj) * 896 + nb * 128}'),
             TIns(f'buffer_load_dwordx4 v{vDmaWo}, s[{sWO}:{sWO+3}], s{sT2} offen lds', f'wo{tau}')]
        return r
    pre = Asm()
    pre(f'v_lshrrev_b32 v{vT0}, 3, v{vLane}')
    pre(f'v_mul_u32_u24 v{vDmaWo}, 896, v{vT0}')
    pre(f'v_bfe_u32 v{vT0}, v{vLane}, 1, 2')
    pre(f'v_xor_b32 v{vT0}, v{vT0}, v{vG4}')
    pre(f'v_lshl_add_u32 v{vDmaWo}, v{vT0}, 5, v{vDmaWo}')
    pre(f'v_and_b32 v{vT0}, 1, v{vLane}')
    pre(f'v_lshl_add_u32 v{vDmaWo}, v{vT0}, 4, v{vDmaWo}')
    pre(f's_mul_i32 s{sWoOff}, s{sW}, {64*896}')
    pre(f's_lshl_b32 s{sT3}, s{sW}, 13')
    if L2PF:
        pre(f's_lshl_b32 s{sT0}, s{sW}, 6')
        pre(f'v_add_u32 v6, s{sT0}, v{vLane}')
        pre('v_min_u32 v6, 111, v6'); pre('v_lshlrev_b32 v6, 7, v6')
        pre(f's_mul_i32 s{sT0}, s{sRB}, {112*128}')
        pre(f'buffer_load_dword v7, v6, s[{sWO}:{sWO+3}], s{sT0} offen')
    flush(pre.items + pf.stamp() + pf.stamp(True))
    body = ['K2_loop:'] + iteration(0) + iteration(1) + L(f's_sub_u32 s{sCnt}, s{sCnt}, 1\ns_cmp_lg_u32 s{sCnt}, 0\ns_cbranch_scc1 K2_loop')
    a.items.extend(resolve_loop(body, st))
    flush(pf.stamp() + pf.stamp(True))
    flush(iteration(0, last=True))
    s = Seg(64)
    for q in range(64): s.mf[q] = pv_mf(q >> 2, q & 3, q >> 2, 1)
    for lr in range(4): s.put(lr, f'v_add_f32 v{vL+lr}, v{vL+lr}, v{vLt+lr}')
    for f in range(4, 16):
        for it in v_read(1, f, f): s.put(4 * f - 13, it)
    its = s.items()
    e = Asm()
    for lr in range(4): allreduce_g4(e, vL + lr, vT2, 'v_add_f32')
    flush(its + e.items)
    m = Asm()
    m.items += pf.stamp()
    m('s_waitcnt lgkmcnt(0)')
    m('s_barrier')
    m(f'v_lshlrev_b32 v8, 3, v{vLane}')
    m(f's_lshl_b32 s{sT0}, s{sW}, 10'); m(f's_add_u32 s{sT0}, s{sT0}, {STAT}')
    m(f'v_add_u32 v9, s{sT0}, v8')
    m(f's_xor_b32 s{sT1}, s{sW}, 2'); m(f's_lshl_b32 s{sT0}, s{sT1}, 10'); m(f's_add_u32 s{sT0}, s{sT0}, {STAT}')
    m(f'v_add_u32 v10, s{sT0}, v8')
    for xx in range(2):
        m(f'v_mov_b32 v{24+2*xx}, v{NEGM(2+xx)}')
        m(f'v_mov_b32 v{25+2*xx}, v{vL+2+xx}')
        m(f'ds_write_b64 v9, v[{24+2*xx}:{25+2*xx}] offset:{xx*512}')
    m(f'v_lshlrev_b32 v8, 4, v{vLane}')
    m(f's_lshl_b32 s{sT0}, s{sW}, 14'); m(f's_add_u32 s{sT0}, s{sT0}, {XAREA}')
    m(f'v_add_u32 v11, s{sT0}, v8')
    m(f's_lshl_b32 s{sT0}, s{sT1}, 14'); m(f's_add_u32 s{sT0}, s{sT0}, {XAREA}')
    m(f'v_add_u32 v12, s{sT0}, v8')
    RC = 64
    for rnd in range(2):
        for dd in range(8):
            for xx in range(2):
                m(f'ds_write_b128 v11, {ar(OG_(8*rnd+dd, 2+xx),4)} offset:{(dd*2+xx)*1024}')
        m('s_waitcnt lgkmcnt(0)')
        m('s_barrier')
        if rnd == 0:
            for xx in range(2):
                m(f'ds_read_b64 v[{28+2*xx}:{29+2*xx}], v10 offset:{xx*512}')
        for dd in range(8):
            for xx in range(2):
                m(f'ds_read_b128 {vr(RC+(dd*2+xx)*4,4)}, v12 offset:{(dd*2+xx)*1024}')
        if rnd == 0:
            for xx in range(2):
                no, lo_ = NEGM(xx), vL + xx
                nt, lt_ = 28 + 2 * xx, 29 + 2 * xx
                so, sot = 32 + 4 * xx, 34 + 4 * xx
                m(f'v_min_f32 v{vT0}, v{no}, v{nt}')
                m(f'v_sub_f32 v{so}, v{vT0}, v{no}')
                m(f'v_sub_f32 v{sot}, v{vT0}, v{nt}')
                m(f'v_exp_f32 v{so}, v{so}')
                m(f'v_exp_f32 v{sot}, v{sot}')
                m('s_nop 0')
                m(f'v_mul_f32 v{vT0}, v{so}, v{lo_}')
                m(f'v_fmac_f32 v{vT0}, v{sot}, v{lt_}')
                m(f'v_rcp_f32 v{vT0}, v{vT0}')
                m('s_nop 0')
                m(f'v_mul_f32 v{so}, v{so}, v{vT0}')
                m(f'v_mul_f32 v{sot}, v{sot}, v{vT0}')
        for dd in range(8):
            dt = 8 * rnd + dd
            for xx in range(2):
                so, sot = 32 + 4 * xx, 34 + 4 * xx
                r = RC + (dd * 2 + xx) * 4; k = OK_(dt, xx)
                for h2 in range(2):
                    m(f'v_pk_mul_f32 v[{r+2*h2}:{r+2*h2+1}], v[{r+2*h2}:{r+2*h2+1}], v[{sot}:{sot+1}] op_sel_hi:[1,0]')
                for h2 in range(2):
                    m(f'v_pk_fma_f32 v[{k+2*h2}:{k+2*h2+1}], v[{k+2*h2}:{k+2*h2+1}], v[{so}:{so+1}], v[{r+2*h2}:{r+2*h2+1}] op_sel_hi:[1,0,1]')
        m('s_waitcnt lgkmcnt(0)')
        m('s_barrier')
    m(f'v_lshlrev_b32 v8, 4, v{vLane}')
    m(f's_lshl_b32 s{sT0}, s{sA}, 15'); m(f's_lshl_b32 s{sT1}, s{sKG}, 11'); m(f's_add_u32 s{sT0}, s{sT0}, s{sT1}')
    m(f's_add_u32 s{sT0}, s{sT0}, {XAREA}')
    m(f'v_add_u32 v9, s{sT0}, v8')
    for e_ in range(8):
        for xx in range(2):
            t0 = OK_(2 * e_, xx); t1 = OK_(2 * e_ + 1, xx)
            m(f'v_cvt_pk_bf16_f32 v{t0}, v{t0}, v{t0+1}')
            m(f'v_cvt_pk_bf16_f32 v{t0+1}, v{t0+2}, v{t0+3}')
            m(f'v_cvt_pk_bf16_f32 v{t0+2}, v{t1}, v{t1+1}')
            m(f'v_cvt_pk_bf16_f32 v{t0+3}, v{t1+2}, v{t1+3}')
            m(f'ds_write_b128 v9, {vr(t0,4)} offset:{e_*4096 + xx*1024}')
    m('s_waitcnt lgkmcnt(0)')
    m('s_barrier')
    m(f'v_add_u32 v9, {XAREA}, v8')
    for i in range(64):
        m(f'ds_read_b128 {ar(4*i,4)}, v9 offset:{i*1024}')
    m('s_waitcnt lgkmcnt(0)')
    m.items.append(('waitvm', 'wo0'))
    m('s_barrier')
    flush(m.items)
    if dbg == 'o':
        d = Asm()
        d(f's_cmp_lg_u32 s{sW}, 0'); d('s_cbranch_scc1 K2_end')
        d(f's_lshl_b32 s{sT0}, s2, 16')
        for i in range(64):
            d(f'buffer_store_dwordx4 {ar(4*i,4)}, v8, s[{sDBG}:{sDBG+3}], s{sT0} offen')
            d(f's_add_u32 s{sT0}, s{sT0}, 1024')
        d('s_waitcnt vmcnt(0)')
        flush(d.items)
        a.label('K2_end'); a('s_endpgm')
        rare_code(a, rare_sites, rowmax, softmax_plain)
        return finish(a)
    w_ = Asm()
    w_.items += pf.stamp()
    w_(f'v_and_b32 v9, 1, v{vG4}')
    w_(f'v_lshl_add_u32 v9, v9, 2, v{vR}')
    w_('v_lshrrev_b32 v10, 1, v9')
    w_(f'v_xor_b32 v10, s{sW}, v10')
    w_('v_lshlrev_b32 v10, 5, v10')
    w_('v_lshl_add_u32 v10, v9, 7, v10')
    w_(f'v_lshl_add_u32 v10, v{vCq}, 3, v10')
    w_(f'v_lshrrev_b32 v9, 1, v{vG4}')
    w_('v_lshl_add_u32 v10, v9, 10, v10')
    w_(f'v_add_u32 v11, {WOSLOT[2]}, v10')
    w_(f's_lshl_b32 s{sT0}, s{sW}, 11')
    w_(f'v_add_u32 v12, s{sT0}, v8')
    def wo_read(tau, f):
        base = 10 if (tau & 3) < 2 else 11
        o = (tau & 1) * 32768 + f * 4096
        r = FR(f)
        return [Ins(f'ds_read_b64_tr_b16 v[{r}:{r+1}], v{base} offset:{o}'),
                Ins(f'ds_read_b64_tr_b16 v[{r+2}:{r+3}], v{base} offset:{o + 2048}')]
    for f in range(4): w_.items += wo_read(0, f)
    flush(w_.items)
    WACC = [48, 64]; WT = 80
    def wo_epilogue(nb):
        r = []
        ac = WACC[nb & 1]
        for pp in range(2):
            t = WT + 4 * pp
            for xx in range(2):
                sreg = ac + (2 * pp + xx) * 4
                r.append(Ins(f'v_cvt_pk_bf16_f32 v{t+2*xx}, v{sreg}, v{sreg+1}'))
                r.append(Ins(f'v_cvt_pk_bf16_f32 v{t+2*xx+1}, v{sreg+2}, v{sreg+3}'))
            r.append(TIns(f'buffer_store_dwordx4 {vr(t,4)}, v12, s[{sPART}:{sPART+3}], s{sT1} offen offset:{pp*1024}', 'st'))
        return r
    for tau in range(14):
        nb = tau >> 1; hf = tau & 1
        s = Seg(32)
        ac = WACC[nb & 1]
        for q in range(32):
            f = q >> 2; rs = q & 3; ks = hf * 8 + f
            c = '0' if (hf == 0 and f == 0) else vr(ac + rs * 4, 4)
            s.mf[q] = f'{MF} {vr(ac+rs*4,4)}, {vr(FR(f),4)}, {ar((ks*4+rs)*4,4)}, {c}'
        for f in range(4, 8):
            for it in wo_read(tau, f): s.put(4 * f - 13, it)
        if tau + 1 < 14:
            s.post[23].append(Ins('s_waitcnt lgkmcnt(0)'))
            s.post[23].append(('waitvm', f'wo{tau+1}'))
            s.post[23].append(Ins('s_barrier'))
            for it in wo_read(tau + 1, 0) + wo_read(tau + 1, 1): s.post[23].append(it)
            for it in wo_read(tau + 1, 2): s.put(27, it)
            for it in wo_read(tau + 1, 3): s.put(31, it)
        nx = tau + 2 if tau < 2 else tau + 2
        lst = [2, 3] if tau == 0 else [tau + 3]
        pos = 0
        for tt in lst:
            if tt < 14:
                for jj in range(8):
                    pq = (jj * 3 if len(lst) == 1 else (pos * 2) % 32)
                    pos += 1
                    for it in wo_dma(tt, jj): s.put(min(pq, 31), it, 3)
        if hf == 0 and nb > 0:
            s.put(8, f's_mov_b32 s{sT1}, {(nb-1)*8192}')
            for i, it in enumerate(wo_epilogue(nb - 1)): s.put(9 + i, it)
        flush(s.items())
    f_ = Asm()
    f_('s_nop 7')
    f_(f's_mov_b32 s{sT1}, {6*8192}')
    f_.items += wo_epilogue(6)
    flush(f_.items + pf.stamp())
    if asmlib.PROF:
        a('s_waitcnt vmcnt(0)')
        a.items += pf.stamp()
        pf.cnt = 16 + 1
        pf.store(a, 14, sW, 4, 13, 'K2_end')
    a.label('K2_end'); a('s_endpgm')
    rare_code(a, rare_sites, rowmax, softmax_plain)
    return finish(a)

def rare_code(a, sites, rowmax, softmax_plain):
    for pb in range(2):
        x = Asm()
        x.label(f'K2_rare{pb}')
        x('s_nop 7'); x('s_nop 7')
        x(f's_mov_b32 s{sT0}, {f2u(U0):#x}')
        for lr in range(4):
            rowmax(x, lr, vT0)
            x(f'v_add_f32 v{vT0}, s{sT0}, v{vT0}')
            x(f'v_max_f32 v{vT0}, 0, v{vT0}')
            x(f'v_ceil_f32 v{vT0}, v{vT0}')
            for i in range(4): x(f'v_sub_f32 v{NEGM(lr)+i}, v{NEGM(lr)+i}, v{vT0}')
            for kt in range(2):
                for i in range(4): x(f'v_sub_f32 v{S_(kt,lr)+i}, v{S_(kt,lr)+i}, v{vT0}')
            x(f'v_exp_f32 v{vT1 if False else vPt}, -v{vT0}')
            x('s_nop 0')
            f = vPt
            x(f'v_mul_f32 v{vL+lr}, v{vL+lr}, v{f}')
            for dt in range(16):
                if lr < 2:
                    for i in range(4): x(f'v_mul_f32 v{OK_(dt,lr)+i}, v{OK_(dt,lr)+i}, v{f}')
                else:
                    for i in range(4): x(f'v_accvgpr_read_b32 v{vPt+1+i}, a{OG_(dt,lr)+i}')
                    for i in range(4): x(f'v_mul_f32 v{vPt+1+i}, v{vPt+1+i}, v{f}')
                    for i in range(4): x(f'v_accvgpr_write_b32 a{OG_(dt,lr)+i}, v{vPt+1+i}')
        softmax_plain(x, pb)
        x('s_nop 1')
        for i, p in enumerate(sites):
            if p == pb:
                x(f's_cmp_eq_u32 s{sSite}, {i}')
                x(f's_cbranch_scc1 K2_ret{i}')
        x('s_endpgm')
        a.items.extend(x.items)

def finish(a):
    probs = check_hazards(a.ins(), 'k2') + check_waits(a.ins(), 'k2')
    for p in probs[:40]: print(p)
    return kernel_text('k2_attn_kernel', a.text(), vgpr=512, sgpr=102, accum=256), ('k2_attn_kernel', 256, 256, LDS_BYTES)
```

```python
from asmlib import *
import asmlib
from k2 import f2u, WS_PART, MF, allreduce_g4
WS_H = 0x1000000
WS_X1 = 0x1800000

import os
EXP = os.environ.get('K3EXP', '')
def gen_k3():
    a = Asm(); st = State()
    def flush(items): a.items.extend(resolve_linear(items, st))
    sX, sPART, sMOD, sW1, sH, sX1 = 16, 20, 24, 28, 32, 36
    sV, sRBK, sHS, sT0, sT1, sT2, sT3, sMask, sDst, sSrc = 40, 41, 42, 43, 44, 45, 46, 47, 48, 49
    SLOT = 28672; HB = 4 * SLOT
    STATS = HB + 28672
    p = Asm()
    p('s_cmp_ge_u32 s2, 256'); p('s_cbranch_scc1 K3_end')
    pf = Prof(2, 64)
    p.items += pf.stamp()
    p('s_load_dwordx2 s[4:5], s[0:1], 0')
    p('s_load_dwordx2 s[6:7], s[0:1], 48')
    p('s_load_dwordx2 s[8:9], s[0:1], 96')
    code_prefetch(p, 'K3', 896, 62, 14, 15, ['v15'], lo='k3_ffn1_kernel')
    p('v_and_b32 v1, 63, v0')
    p('v_lshrrev_b32 v6, 6, v0')
    p('v_and_b32 v2, 15, v0')
    p(f'v_readfirstlane_b32 s{sV}, v6')
    p('v_lshrrev_b32 v3, 4, v1')
    p('v_bfe_u32 v4, v0, 2, 2')
    p('v_and_b32 v5, 3, v0')
    p(f's_and_b32 s{sRBK}, s2, 7'); p(f's_lshr_b32 s{sT0}, s2, 5'); p(f's_lshl_b32 s{sT0}, s{sT0}, 3'); p(f's_or_b32 s{sRBK}, s{sRBK}, s{sT0}')
    p(f's_lshr_b32 s{sHS}, s2, 3'); p(f's_and_b32 s{sHS}, s{sHS}, 3')
    p(f's_mov_b32 s{sMask}, 0xffff0000')
    p('s_waitcnt lgkmcnt(0)')
    srd(p, sX, 4, 1835008)
    srd(p, sW1, 6, 448 * 3584)
    srd(p, sMOD, 8, 10752)
    p(f's_add_u32 s4, s8, {WS_PART}'); p('s_addc_u32 s5, s9, 0'); srd(p, sPART, 4, 8 * 1835008)
    p(f's_add_u32 s4, s8, {WS_H}'); p('s_addc_u32 s5, s9, 0'); srd(p, sH, 4, 128 * 56 * 1024)
    p(f's_add_u32 s4, s8, {WS_X1}'); p('s_addc_u32 s5, s9, 0'); srd(p, sX1, 4, 1835008)
    p(f's_lshr_b32 s{sT0}, s{sRBK}, 1'); p(f's_mul_i32 s{sT0}, s{sT0}, 57344')
    p(f's_and_b32 s{sT1}, s{sRBK}, 1'); p(f's_lshl_b32 s{sT1}, s{sT1}, 10'); p(f's_add_u32 s{sT0}, s{sT0}, s{sT1}')
    p(f's_lshl_b32 s{sT1}, s{sV}, 12'); p(f's_add_u32 s{sT0}, s{sT0}, s{sT1}')
    p('v_lshlrev_b32 v6, 4, v1')
    p(f'v_add_u32 v7, s{sT0}, v6')
    PR = 64
    p(f's_mov_b32 s{sT0}, 0')
    if EXP == 'hs0':
        p(f's_cmp_eq_u32 s{sHS}, 0'); p(f's_cselect_b32 s{sT2}, 0, 0x7000000'); p(f'v_add_u32 v7, s{sT2}, v7')
    for g in range(8):
        for t in range(2):
            p(f'buffer_load_dwordx4 {vr(PR+(g*2+t)*4,4)}, v7, s[{sPART}:{sPART+3}], s{sT0} offen offset:{t*2048}')
        if g < 7: p(f's_add_u32 s{sT0}, s{sT0}, 1835008')
    p(f's_lshl_b32 s{sT0}, s{sRBK}, 5')
    p(f'v_add_u32 v8, s{sT0}, v2')
    p('v_mul_u32_u24 v8, 896, v8')
    p('v_lshl_add_u32 v8, v3, 3, v8')
    p(f's_lshl_b32 s{sT0}, s{sV}, 6')
    p(f'v_add_u32 v8, s{sT0}, v8')
    p(f's_mov_b32 s{sT1}, 14336')
    XR = 40
    for x in range(2):
        for t in range(2):
            so = '0' if x == 0 else f's{sT1}'
            p(f'buffer_load_dwordx2 {vr(XR+(x*2+t)*2,2)}, v8, s[{sX}:{sX+3}], {so} offen offset:{t*32}')
    p(f's_lshl_b32 s{sT0}, s{sV}, 7')
    p('v_lshlrev_b32 v9, 4, v3')
    p(f'v_add_u32 v9, s{sT0}, v9')
    GA, SB, CB = 16, 24, 32
    for base, sec in ((GA, 2), (SB, 3), (CB, 4)):
        for t in range(2):
            off = sec * 1792 + t * 64
            if off <= 4095:
                p(f'buffer_load_dwordx4 {vr(base+4*t,4)}, v9, s[{sMOD}:{sMOD+3}], 0 offen offset:{off}')
            else:
                p(f's_mov_b32 s{sT0}, {sec*1792}')
                p(f'buffer_load_dwordx4 {vr(base+4*t,4)}, v9, s[{sMOD}:{sMOD+3}], s{sT0} offen offset:{t*64}')
    p('v_lshrrev_b32 v10, 3, v1')
    p('v_mul_u32_u24 v10, 3584, v10')
    p('v_bfe_u32 v11, v1, 1, 2')
    p('v_xor_b32 v11, v11, v3')
    p('v_lshl_add_u32 v10, v11, 5, v10')
    p('v_and_b32 v11, 1, v1')
    p('v_lshl_add_u32 v10, v11, 4, v10')
    for k in range(2):
        p(f's_lshl_b32 s{sT0}, s{sV}, 1'); p(f's_add_u32 s{sT0}, s{sT0}, {k}')
        p(f's_mul_i32 s{sT1}, s{sT0}, 37'); p(f's_lshr_b32 s{sT1}, s{sT1}, 8')
        p(f's_mul_i32 s{sT2}, s{sT1}, 7'); p(f's_sub_u32 s{sT2}, s{sT0}, s{sT2}')
        p(f's_mul_i32 s{sT1}, s{sT1}, {8*3584}'); p(f's_lshl_b32 s{sT2}, s{sT2}, 7'); p(f's_add_u32 s{sT1}, s{sT1}, s{sT2}')
        p(f's_mul_i32 s{sT2}, s{sHS}, 896'); p(f's_add_u32 s{sSrc+k}, s{sT1}, s{sT2}')
    p(f's_lshl_b32 s{sDst}, s{sV}, 11')
    def w1_dma(ks, k):
        return [Ins(f's_add_u32 m0, s{sDst}, {(ks & 3) * SLOT + k * 1024}'),
                Ins(f's_add_u32 s{sT3}, s{sSrc+k}, {ks * 32 * 3584}'),
                TIns(f'buffer_load_dwordx4 v10, s[{sW1}:{sW1+3}], s{sT3} offen lds', f'w{ks}')]
    for ks in range(4):
        for k in range(2):
            if EXP != 'now1': p.items += w1_dma(ks, k)
    p(f's_lshr_b32 s{sT0}, s2, 3'); p(f's_mul_i32 s{sT0}, s{sT0}, {392*128}')
    p('v_min_u32 v14, 391, v0'); p('v_lshlrev_b32 v14, 7, v14')
    if EXP not in ('now1', 'nopf'): p(f'buffer_load_dword v14, v14, s[{sW1}:{sW1+3}], s{sT0} offen')
    AC = 48
    for g in range(8):
        for t in range(2):
            r = PR + (g * 2 + t) * 4
            for d in range(4):
                x = d >> 1; o = AC + (t * 2 + x) * 4 + (d & 1) * 2
                if g == 0:
                    p(f'v_lshlrev_b32 v{o}, 16, v{r+d}')
                    p(f'v_and_b32 v{o+1}, s{sMask}, v{r+d}')
                else:
                    p(f'v_lshlrev_b32 v12, 16, v{r+d}')
                    p(f'v_and_b32 v13, s{sMask}, v{r+d}')
                    p(f'v_pk_add_f32 v[{o}:{o+1}], v[{o}:{o+1}], v[12:13]')
    for t in range(2):
        for x in range(2):
            o = AC + (t * 2 + x) * 4
            xr = XR + (x * 2 + t) * 2
            for r in range(4):
                p(f'v_cvt_pk_bf16_f32 v{o+r}, 0, v{o+r}')
            for r in range(4):
                p(f'v_mul_f32 v{o+r}, v{o+r}, v{GA+4*t+r}')
            for r in range(4):
                p(f'v_cvt_pk_bf16_f32 v{o+r}, 0, v{o+r}')
            for d in range(2):
                p(f'v_lshlrev_b32 v12, 16, v{xr+d}')
                p(f'v_and_b32 v13, s{sMask}, v{xr+d}')
                p(f'v_pk_add_f32 v[{o+2*d}:{o+2*d+1}], v[{o+2*d}:{o+2*d+1}], v[12:13]')
            for d in range(2):
                p(f'v_cvt_pk_bf16_f32 v{xr+d}, v{o+2*d}, v{o+2*d+1}')
            for d in range(2):
                p(f'v_lshlrev_b32 v{o+2*d}, 16, v{xr+d}')
                p(f'v_and_b32 v{o+2*d+1}, s{sMask}, v{xr+d}')
    p.items += pf.stamp()
    p(f's_cmp_lg_u32 s{sHS}, 0'); p('s_cbranch_scc1 K3_nox1')
    p(f's_mov_b32 s{sT1}, 14336')
    flush(p.items)
    p = Asm()
    for x in range(2):
        for t in range(2):
            so = '0' if x == 0 else f's{sT1}'
            p(f'buffer_store_dwordx2 {vr(XR+(x*2+t)*2,2)}, v8, s[{sX1}:{sX1+3}], {so} offen offset:{t*32}')
    a.items.extend(p.items)
    a.label('K3_nox1')
    p = Asm()
    for x in range(2):
        o0 = AC + x * 4; o1 = AC + (2 + x) * 4
        m = 64 + 2 * x
        p(f'v_add_f32 v{m}, v{o0}, v{o0+1}')
        for r in (o0 + 2, o0 + 3, o1, o1 + 1, o1 + 2, o1 + 3): p(f'v_add_f32 v{m}, v{m}, v{r}')
        allreduce_g4(p, m, 12, 'v_add_f32')
        p(f'v_mul_f32 v{m}, {f2u(1/32):#x}, v{m}')
        p(f'v_sub_f32 v12, v{o0}, v{m}')
        p(f'v_mul_f32 v{m+1}, v12, v12')
        for r in (o0 + 1, o0 + 2, o0 + 3, o1, o1 + 1, o1 + 2, o1 + 3):
            p(f'v_sub_f32 v12, v{r}, v{m}')
            p(f'v_fmac_f32 v{m+1}, v12, v12')
        allreduce_g4(p, m + 1, 12, 'v_add_f32')
    p('v_lshlrev_b32 v12, 7, v2')
    p(f's_lshl_b32 s{sT0}, s{sV}, 3'); p(f's_add_u32 s{sT0}, s{sT0}, {STATS}')
    p(f'v_add_u32 v13, s{sT0}, v12')
    for x in range(2): p(f'ds_write_b64 v13, v[{64+2*x}:{65+2*x}] offset:{x*2048}')
    p('s_waitcnt lgkmcnt(0)')
    p('s_barrier')
    p(f'v_add_u32 v13, {STATS}, v12')
    SR = 72
    for x in range(2):
        for i in range(7): p(f'ds_read_b128 {vr(SR+28*x+4*i,4)}, v13 offset:{x*2048+i*16}')
    for x in range(2):
        b = SR + 28 * x
        mean = 64 + 2 * x; rs_ = mean + 1
        p(f'v_add_f32 v{mean}, v{b}, v{b+2}')
        for i in range(2, 14): p(f'v_add_f32 v{mean}, v{mean}, v{b+2*i}')
        p(f'v_mul_f32 v{mean}, {f2u(1/14):#x}, v{mean}')
        p(f'v_add_f32 v{rs_}, v{b+1}, v{b+3}')
        for i in range(2, 14): p(f'v_add_f32 v{rs_}, v{rs_}, v{b+2*i+1}')
        p('v_mov_b32 v13, 0')
        for i in range(14):
            p(f'v_sub_f32 v12, v{b+2*i}, v{mean}')
            p('v_fmac_f32 v13, v12, v12')
        p(f'v_fmac_f32 v{rs_}, {f2u(32.0):#x}, v13')
        p(f'v_mov_b32 v13, {f2u(1e-5):#x}')
        p(f'v_fmac_f32 v13, {f2u(1/448):#x}, v{rs_}')
        p(f'v_rsq_f32 v{rs_}, v13')
    p('v_lshlrev_b32 v6, 4, v1')
    p(f's_lshl_b32 s{sT0}, s{sV}, 10'); p(f's_add_u32 s{sT0}, s{sT0}, {HB}')
    p(f'v_add_u32 v13, s{sT0}, v6')
    for x in range(2):
        mean = 64 + 2 * x; rs_ = mean + 1
        o = 72 + 4 * x
        for t in range(2):
            src = AC + (t * 2 + x) * 4
            for r in range(4):
                p(f'v_sub_f32 v{src+r}, v{src+r}, v{mean}')
                p(f'v_mul_f32 v{src+r}, v{src+r}, v{rs_}')
                p(f'v_fma_f32 v{src+r}, v{src+r}, v{CB+4*t+r}, v{SB+4*t+r}')
            p(f'v_cvt_pk_bf16_f32 v{o+2*t}, v{src}, v{src+1}')
            p(f'v_cvt_pk_bf16_f32 v{o+2*t+1}, v{src+2}, v{src+3}')
        p(f'ds_write_b128 v13, {vr(o,4)} offset:{x*14336}')
    p('v_and_b32 v12, 1, v3'); p('v_lshl_add_u32 v12, v12, 2, v4')
    p('v_lshrrev_b32 v14, 1, v3'); p('v_mul_u32_u24 v14, 7168, v14')
    p('v_lshl_add_u32 v14, v12, 7, v14')
    p('v_lshl_add_u32 v14, v5, 3, v14')
    p(f's_lshr_b32 s{sT0}, s{sV}, 1'); p(f's_lshl_b32 s{sT0}, s{sT0}, 10')
    p(f'v_add_u32 v14, s{sT0}, v14')
    p('v_lshrrev_b32 v12, 1, v12')
    p(f's_and_b32 s{sT0}, s{sV}, 1'); p(f's_lshl_b32 s{sT0}, s{sT0}, 1')
    AY = [16, 17, 18, 19]
    for y in range(2):
        p(f's_add_u32 s{sT1}, s{sT0}, {y}')
        p(f'v_xor_b32 v15, s{sT1}, v12')
        p(f'v_lshl_add_u32 v{AY[y]}, v15, 5, v14')
        p(f'v_add_u32 v{AY[y+2]}, {2*SLOT}, v{AY[y]}')
    p(f'v_add_u32 v20, {HB}, v6')
    p('s_waitcnt lgkmcnt(0)')
    p.items.append(('waitvm', 'w0'))
    p('s_barrier')
    flush(p.items)
    ACC = 48
    def rd(ks):
        r = []
        s_ = ks & 1
        for y in range(2):
            base = AY[y + 2 * ((ks & 3) >> 1)]; o = (ks & 1) * SLOT
            f = 24 + (s_ * 2 + y) * 4
            r.append(Ins(f'ds_read_b64_tr_b16 v[{f}:{f+1}], v{base} offset:{o}'))
            r.append(Ins(f'ds_read_b64_tr_b16 v[{f+2}:{f+3}], v{base} offset:{o+14336}'))
        for x in range(2):
            f = 72 + (s_ * 2 + x) * 4
            r.append(Ins(f'ds_read_b128 {vr(f,4)}, v20 offset:{(x*14+ks)*1024}'))
        return r
    flush(pf.stamp())
    flush(rd(0))
    for ks in range(14):
        p = Asm()
        s_ = ks & 1
        if ks + 1 < 14:
            p.items.append(('waitvm', f'w{ks+1}'))
            p('s_barrier')
            p.items += rd(ks + 1)
            if ks >= 1 and ks + 3 < 14:
                for k in range(2): p.items += w1_dma(ks + 3, k)
        for y in range(2):
            for x in range(2):
                ac = ACC + (y * 2 + x) * 4
                c = '0' if ks == 0 else vr(ac, 4)
                p(f'{MF} {vr(ac,4)}, {vr(24+(s_*2+y)*4,4)}, {vr(72+(s_*2+x)*4,4)}, {c}')
        flush(p.items)
    p = Asm()
    p('s_nop 7')
    p(f's_mul_i32 s{sT0}, s{sRBK}, {2*56}'); p(f's_mul_i32 s{sT1}, s{sHS}, 14'); p(f's_add_u32 s{sT0}, s{sT0}, s{sT1}')
    p(f's_add_u32 s{sT0}, s{sT0}, s{sV}'); p(f's_lshl_b32 s{sT0}, s{sT0}, 10')
    p(f's_add_u32 s{sT1}, s{sT0}, {56*1024}')
    for x in range(2):
        o = 72 + 4 * x
        for y in range(2):
            ac = ACC + (y * 2 + x) * 4
            for r in range(4): p(f'v_max_f32 v{ac+r}, 0, v{ac+r}')
            p(f'v_cvt_pk_bf16_f32 v{o+2*y}, v{ac}, v{ac+1}')
            p(f'v_cvt_pk_bf16_f32 v{o+2*y+1}, v{ac+2}, v{ac+3}')
        p(f'buffer_store_dwordx4 {vr(o,4)}, v6, s[{sH}:{sH+3}], s{sT0 if x == 0 else sT1} offen')
    flush(p.items + pf.stamp())
    if asmlib.PROF:
        a('s_waitcnt vmcnt(0)')
        a.items += pf.stamp()
        pf.store(a, 8, sV, 4, 12, 'K3_end')
    a.label('K3_end'); a('s_endpgm')
    probs = check_hazards(a.ins(), 'k3') + check_waits(a.ins(), 'k3')
    for q in probs[:40]: print(q)
    return kernel_text('k3_ffn1_kernel', a.text(), vgpr=128, sgpr=96, accum=128), ('k3_ffn1_kernel', 256, 896, STATS + 4096)

def gen_k4():
    a = Asm(); st = State()
    def flush(items): a.items.extend(resolve_linear(items, st))
    sH, sW2, sMOD, sX1, sOUT = 16, 20, 24, 28, 32
    sV, sRB, sNB, sT0, sT1, sT2, sT3, sDst, sSrc, sMask = 40, 41, 42, 43, 44, 45, 46, 47, 48, 49
    p = Asm()
    p('s_cmp_ge_u32 s2, 224'); p('s_cbranch_scc1 K4_end')
    pf = Prof(3, 64)
    p.items += pf.stamp()
    p('s_load_dwordx2 s[4:5], s[0:1], 56')
    p('s_load_dwordx2 s[6:7], s[0:1], 80')
    p('s_load_dwordx2 s[8:9], s[0:1], 96')
    code_prefetch(p, 'K4', 512, 62, 14, 15, ['v15'], lo='k4_ffn2_kernel')
    p('v_and_b32 v1, 63, v0'); p('v_lshrrev_b32 v6, 6, v0'); p('v_and_b32 v2, 15, v0')
    p(f'v_readfirstlane_b32 s{sV}, v6')
    p('v_lshrrev_b32 v3, 4, v1'); p('v_bfe_u32 v4, v0, 2, 2'); p('v_and_b32 v5, 3, v0')
    p(f's_lshr_b32 s{sT0}, s2, 3'); p(f's_mul_i32 s{sT1}, s{sT0}, 37'); p(f's_lshr_b32 s{sT1}, s{sT1}, 8')
    p(f's_mul_i32 s{sT2}, s{sT1}, 7'); p(f's_sub_u32 s{sNB}, s{sT0}, s{sT2}')
    p(f's_and_b32 s{sRB}, s2, 7'); p(f's_lshl_b32 s{sT1}, s{sT1}, 3'); p(f's_add_u32 s{sRB}, s{sRB}, s{sT1}')
    p(f's_mov_b32 s{sMask}, 0xffff0000')
    p('s_waitcnt lgkmcnt(0)')
    srd(p, sW2, 4, 1792 * 896)
    srd(p, sOUT, 6, 1835008)
    srd(p, sMOD, 8, 10752)
    p(f's_add_u32 s4, s8, {WS_H}'); p('s_addc_u32 s5, s9, 0'); srd(p, sH, 4, 128 * 56 * 1024)
    p(f's_add_u32 s4, s8, {WS_X1}'); p('s_addc_u32 s5, s9, 0'); srd(p, sX1, 4, 1835008)
    p('v_lshrrev_b32 v10, 3, v1'); p('v_mul_u32_u24 v10, 896, v10')
    p('v_bfe_u32 v11, v1, 1, 2'); p('v_xor_b32 v11, v11, v3'); p('v_lshl_add_u32 v10, v11, 5, v10')
    p('v_and_b32 v11, 1, v1'); p('v_lshl_add_u32 v10, v11, 4, v10')
    p(f's_mul_i32 s{sSrc}, s{sV}, {7*32*896}'); p(f's_lshl_b32 s{sT0}, s{sNB}, 7'); p(f's_add_u32 s{sSrc}, s{sSrc}, s{sT0}')
    p(f's_lshl_b32 s{sDst}, s{sV}, 14')
    def w2_dma(j, rg):
        return [Ins(f's_add_u32 m0, s{sDst}, {(j & 3) * 4096 + rg * 1024}'),
                Ins(f's_add_u32 s{sT3}, s{sSrc}, {(j * 32 + rg * 8) * 896}'),
                TIns(f'buffer_load_dwordx4 v10, s[{sW2}:{sW2+3}], s{sT3} offen lds', f'w{j}')]
    p('v_lshlrev_b32 v6, 4, v1')
    p(f's_mul_i32 s{sT0}, s{sRB}, {4*56}'); p(f's_mul_i32 s{sT1}, s{sV}, 7'); p(f's_add_u32 s{sT0}, s{sT0}, s{sT1}'); p(f's_lshl_b32 s{sT0}, s{sT0}, 10')
    p(f'v_add_u32 v7, s{sT0}, v6')
    BR = 128
    def b_load(j):
        r = []
        for rs in range(4):
            r.append(Ins(f's_mov_b32 s{sT2}, {rs*56*1024 + (j//4)*4096}'))
            r.append(Ins(f'buffer_load_dwordx4 {vr(BR+(j*4+rs)*4,4)}, v7, s[{sH}:{sH+3}], s{sT2} offen offset:{(j%4)*1024}'))
        return r
    for j in range(4):
        for rg in range(4): p.items += w2_dma(j, rg)
        p.items += b_load(j)
    for j in range(4, 7): p.items += b_load(j)
    p(f's_lshr_b32 s{sT0}, s2, 3'); p(f's_mul_i32 s{sT0}, s{sT0}, {448*128}')
    p('v_min_u32 v13, 447, v0'); p('v_lshlrev_b32 v13, 7, v13')
    p(f'buffer_load_dword v13, v13, s[{sW2}:{sW2+3}], s{sT0} offen')
    p(f's_lshl_b32 s{sT0}, s{sRB}, 6'); p(f's_lshr_b32 s{sT1}, s{sV}, 1'); p(f's_lshl_b32 s{sT1}, s{sT1}, 4'); p(f's_add_u32 s{sT0}, s{sT0}, s{sT1}')
    p(f'v_add_u32 v8, s{sT0}, v2'); p('v_mul_u32_u24 v8, 896, v8')
    p('v_lshl_add_u32 v8, v3, 3, v8')
    p(f's_lshl_b32 s{sT0}, s{sNB}, 7'); p(f's_and_b32 s{sT1}, s{sV}, 1'); p(f's_lshl_b32 s{sT1}, s{sT1}, 6'); p(f's_add_u32 s{sT0}, s{sT0}, s{sT1}')
    p(f'v_add_u32 v8, s{sT0}, v8')
    for t in range(2):
        p(f'buffer_load_dwordx2 v[{16+2*t}:{17+2*t}], v8, s[{sX1}:{sX1+3}], 0 offen offset:{t*32}')
    p(f's_lshl_b32 s{sT0}, s{sT0}, 1'); p(f's_add_u32 s{sT0}, s{sT0}, {5*1792}')
    p('v_lshlrev_b32 v9, 4, v3')
    for t in range(2):
        p(f'buffer_load_dwordx4 {vr(20+4*t,4)}, v9, s[{sMOD}:{sMOD+3}], s{sT0} offen offset:{t*64}')
    p('v_and_b32 v12, 1, v3'); p('v_lshl_add_u32 v12, v12, 2, v4')
    p('v_lshrrev_b32 v14, 1, v3'); p('v_lshlrev_b32 v14, 10, v14')
    p('v_lshl_add_u32 v14, v12, 7, v14'); p('v_lshl_add_u32 v14, v5, 3, v14')
    p(f'v_add_u32 v14, s{sDst}, v14')
    p('v_lshrrev_b32 v12, 1, v12')
    AN = [28, 29, 30, 31]
    for nt in range(4):
        p(f'v_xor_b32 v15, {nt}, v12')
        p(f'v_lshl_add_u32 v{AN[nt]}, v15, 5, v14')
    flush(p.items)
    ACC = 64
    def rd(j):
        r = []
        for nt in range(4):
            f = 32 + ((j & 1) * 4 + nt) * 4
            o = (j & 3) * 4096
            r.append(Ins(f'ds_read_b64_tr_b16 v[{f}:{f+1}], v{AN[nt]} offset:{o}'))
            r.append(Ins(f'ds_read_b64_tr_b16 v[{f+2}:{f+3}], v{AN[nt]} offset:{o+2048}'))
        return r
    flush([('waitvm', 'w0')] + pf.stamp() + rd(0))
    for j in range(7):
        p = Asm()
        if j + 1 < 7:
            p.items.append(('waitvm', f'w{j+1}'))
            p.items += rd(j + 1)
        for nt in range(4):
            for rs in range(4):
                ac = ACC + (rs * 4 + nt) * 4
                c = '0' if j == 0 else vr(ac, 4)
                p(f'{MF} {vr(ac,4)}, {vr(32+((j&1)*4+nt)*4,4)}, {vr(BR+(j*4+rs)*4,4)}, {c}')
        if j + 4 < 7:
            for rg in range(4): p.items += w2_dma(j + 4, rg)
        flush(p.items)
    p = Asm()
    p.items += pf.stamp()
    p('s_waitcnt vmcnt(0) lgkmcnt(0)')
    p('s_barrier')
    p('s_nop 7')
    p(f'v_add_u32 v12, s{sDst}, v6')
    for i in range(16): p(f'ds_write_b128 v12, {vr(ACC+4*i,4)} offset:{i*1024}')
    p('s_waitcnt lgkmcnt(0)')
    p('s_barrier')
    p(f's_lshl_b32 s{sT0}, s{sV}, 11')
    p(f'v_add_u32 v12, s{sT0}, v6')
    p(f'v_add_u32 v13, 65536, v12')
    for u in range(8):
        for t in range(2):
            base = 12 if u < 4 else 13
            p(f'ds_read_b128 {vr(ACC+(u*2+t)*4,4)}, v{base} offset:{(u&3)*16384 + t*1024}')
    for u in range(1, 8):
        for t in range(2):
            for h in range(2):
                d = ACC + t * 4 + 2 * h; s_ = ACC + (u * 2 + t) * 4 + 2 * h
                p(f'v_pk_add_f32 v[{d}:{d+1}], v[{d}:{d+1}], v[{s_}:{s_+1}]')
    for t in range(2):
        o = ACC + 4 * t
        for r in range(4): p(f'v_cvt_pk_bf16_f32 v{o+r}, 0, v{o+r}')
        for r in range(4): p(f'v_mul_f32 v{o+r}, v{o+r}, v{20+4*t+r}')
        for r in range(4): p(f'v_cvt_pk_bf16_f32 v{o+r}, 0, v{o+r}')
        for d in range(2):
            p(f'v_lshlrev_b32 v12, 16, v{16+2*t+d}')
            p(f'v_and_b32 v13, s{sMask}, v{16+2*t+d}')
            p(f'v_pk_add_f32 v[{o+2*d}:{o+2*d+1}], v[{o+2*d}:{o+2*d+1}], v[12:13]')
        for d in range(2): p(f'v_cvt_pk_bf16_f32 v{16+2*t+d}, v{o+2*d}, v{o+2*d+1}')
        p(f'buffer_store_dwordx2 v[{16+2*t}:{17+2*t}], v8, s[{sOUT}:{sOUT+3}], 0 offen offset:{t*32}')
    flush(p.items + pf.stamp())
    if asmlib.PROF:
        a('s_waitcnt vmcnt(0)')
        a.items += pf.stamp()
        pf.store(a, 8, sV, 4, 12, 'K4_end')
    a.label('K4_end'); a('s_endpgm')
    probs = check_hazards(a.ins(), 'k4') + check_waits(a.ins(), 'k4')
    for q in probs[:40]: print(q)
    return kernel_text('k4_ffn2_kernel', a.text(), vgpr=240, sgpr=96, accum=240), ('k4_ffn2_kernel', 224, 512, 131072)
```

```python
import re

NAME = 'adaLN_cond__gqa_block_cached__dense_activation_relu__prompt'

def vr(i, n=1):
    return f'v{i}' if n == 1 else f'v[{i}:{i+n-1}]'
def ar(i, n=1):
    return f'a{i}' if n == 1 else f'a[{i}:{i+n-1}]'
def sr(i, n=1):
    return f's{i}' if n == 1 else f's[{i}:{i+n-1}]'

_REG = re.compile(r'^(-|abs\()?\s*([vas])(?:(\d+)|\[(\d+):(\d+)\])\)?$')

def parse_reg(tok):
    tok = tok.strip()
    if tok in ('vcc', 'exec', 'm0', 'scc'):
        return [(tok, 0)]
    m = _REG.match(tok)
    if not m: return []
    k = m.group(2)
    if m.group(3) is not None:
        return [(k, int(m.group(3)))]
    return [(k, i) for i in range(int(m.group(4)), int(m.group(5)) + 1)]

class Ins:
    __slots__ = ('text', 'op', 'dst', 'src', 'kind', 'ops')
    def __init__(self, text):
        self.text = text
        t = text.split(';')[0].strip()
        parts = t.split(None, 1)
        self.op = parts[0]
        rest = parts[1] if len(parts) > 1 else ''
        ops = [o.strip() for o in rest.split(',')] if rest else []
        clean = []
        for o in ops:
            toks = o.split()
            clean.append(toks[0] if toks else '')
        self.ops = clean
        op = self.op
        R = [parse_reg(o) for o in clean]
        flat = lambda l: [x for y in l for x in y]
        dst, src = [], []
        if op.startswith('v_mfma'):
            self.kind = 'mfma'; dst = R[0]; src = flat(R[1:])
        elif op.startswith('ds_read') or op.startswith('ds_bpermute') or op.startswith('ds_swizzle'):
            self.kind = 'ds'; dst = R[0]; src = flat(R[1:])
        elif op.startswith('ds_write') or op.startswith('ds_add'):
            self.kind = 'ds'; src = flat(R)
        elif op.startswith('buffer_load') or op.startswith('global_load'):
            self.kind = 'vmem'
            if ' lds' in t:
                src = flat(R) + [('m0', 0)]
            else:
                dst = R[0]; src = flat(R[1:])
        elif op.startswith('buffer_store') or op.startswith('global_store'):
            self.kind = 'vmem'; src = flat(R)
        elif op.startswith('buffer_atomic') or op.startswith('global_atomic'):
            self.kind = 'vmem'; src = flat(R)
            if ' sc0' in t: dst = R[0]
        elif op.startswith('buffer_') :
            self.kind = 'vmem'
        elif op.startswith('v_cmp'):
            self.kind = 'valu'; dst = R[0]; src = flat(R[1:])
        elif op.startswith('v_permlane') :
            self.kind = 'valu'; dst = R[0] + R[1]; src = R[0] + R[1]
        elif op.startswith('v_readfirstlane') or op.startswith('v_readlane'):
            self.kind = 'valu'; dst = R[0]; src = flat(R[1:])
        elif op.startswith('v_'):
            self.kind = 'valu'; dst = R[0]; src = flat(R[1:])
            if op.startswith('v_fmac') or op.startswith('v_dot2c') or op.startswith('v_mac') or 'dpp' in op or 'dpp' in t or 'row_' in t:
                src = src + R[0]
            if op.startswith('v_cndmask') and len(clean) == 3: src = src + [('vcc', 0)]
            if op.startswith('v_add_co') or op.startswith('v_addc_co') or op.startswith('v_sub_co'):
                dst = R[0] + R[1]; src = flat(R[2:])
        elif op.startswith('s_waitcnt') or op in ('s_barrier', 's_nop', 's_endpgm', 's_setprio', 's_sleep', 's_branch') or op.startswith('s_cbranch'):
            self.kind = 'sctl'
        elif op.startswith('s_load') or op.startswith('s_memtime') or op.startswith('s_memrealtime'):
            self.kind = 'smem'; dst = R[0]; src = flat(R[1:])
        elif op.startswith('s_cmov'):
            self.kind = 'salu'; dst = R[0]; src = flat(R)
        elif op.startswith('s_cmp'):
            self.kind = 'salu'; src = flat(R)
        elif op.startswith('s_'):
            self.kind = 'salu'; dst = R[0]; src = flat(R[1:])
        else:
            raise ValueError('unknown op ' + text)
        self.dst = dst; self.src = src

TRANS = ('v_exp_f32', 'v_log_f32', 'v_rcp_f32', 'v_rsq_f32', 'v_sqrt_f32', 'v_sin_f32', 'v_cos_f32')

def states(ins):
    if ins.op == 's_nop':
        return int(ins.ops[0], 0) + 1
    return 1

def mfma_passes(op):
    if '32x32x16' in op: return 8
    if '16x16x32' in op: return 4
    if '16x16x4_f32' in op or '16x16x4f32' in op: return 8
    raise ValueError(op)

def check_hazards(seq, where=''):
    probs = []
    n = len(seq)
    for i, c in enumerate(seq):
        if c.kind == 'sctl': continue
        dist = 0
        j = i - 1
        csrc = set(c.src); cdst = set(c.dst)
        while j >= 0 and dist < 20:
            p = seq[j]
            pd = set(p.dst)
            need = 0; why = ''
            if p.kind == 'mfma':
                ps = mfma_passes(p.op)
                if c.kind == 'mfma':
                    cA = set(parse_reg(c.ops[1])) | set(parse_reg(c.ops[2]))
                    cC = set(parse_reg(c.ops[3]))
                    if pd & cA: need = {4: 8, 8: 12}[ps]; why = 'mfma D->A/B'
                    elif pd & cC and (pd != cC): need = {4: 6, 8: 10}[ps]; why = 'mfma D->C overlap'
                    elif pd & cdst and not (pd == cdst and pd == cC) and pd != cdst: need = {4: 6, 8: 10}[ps]; why = 'mfma D/D partial'
                elif c.kind in ('valu', 'ds', 'vmem'):
                    if pd & (csrc | cdst): need = {4: 8, 8: 12}[ps]; why = 'mfma D->valu/mem'
                    if c.kind == 'valu':
                        pC = set(parse_reg(p.ops[3]))
                        if pC & cdst: need = max(need, {4: 3, 8: 7}[ps]); why = why or 'mfma C WAR'
            elif p.kind == 'valu':
                pv = {r for r in pd if r[0] in 'va'}
                psg = {r for r in pd if r[0] in ('s', 'vcc')}
                if c.kind == 'mfma' and pv & csrc: need = 2; why = 'valu->mfma'
                if c.kind == 'valu':
                    if p.op.replace('_e32', '').replace('_e64', '') in TRANS and pv & csrc and c.op not in TRANS: need = max(need, 1); why = 'trans->valu'
                    if p.op.replace('_e32', '').replace('_e64', '') in TRANS and pv & csrc and c.op in TRANS: need = max(need, 1); why = 'trans->trans(pad)'
                    if c.op.startswith('v_permlane') and pv & csrc: need = max(need, 2); why = 'valu->permlane'
                    if (c.op.startswith('v_readfirstlane') or c.op.startswith('v_readlane')) and pv & csrc: need = max(need, 1); why = 'valu->readlane'
                    if ('row_' in c.text or 'quad_perm' in c.text) and pv & csrc: need = max(need, 2); why = 'valu->dpp'
                    if psg & csrc: need = max(need, 2); why = 'valu sgpr->valu'
                if c.kind == 'vmem' and {r for r in psg if r[0] == 's'} & csrc: need = max(need, 5); why = 'valu sgpr->vmem'
                if c.kind == 'salu' and psg & csrc: need = max(need, 1); why = 'valu sgpr->salu(pad)'
            elif p.kind == 'salu':
                if ('m0', 0) in pd and c.kind == 'vmem' and ('m0', 0) in csrc: need = 1; why = 'm0->dma'
            elif p.kind == 'vmem':
                if ('store' in p.op) and ('x4' in p.op or 'x3' in p.op) and c.kind == 'valu':
                    data = set(parse_reg(p.ops[0])) if p.op.startswith('buffer') else set(parse_reg(p.ops[1]))
                    if data & cdst: need = 2; why = 'store data WAR'
            if need > dist:
                probs.append(f'{where} hazard {why}: need {need} have {dist}: [{p.text}] -> [{c.text}]')
            dist += states(p)
            j -= 1
    return probs

def check_waits(seq, where=''):
    probs = []
    lg = []
    vm = []
    for c in seq:
        if c.op == 's_waitcnt':
            m = re.search(r'lgkmcnt\((\d+)\)', c.text)
            if m:
                k = int(m.group(1))
                while len(lg) > k: lg.pop(0)
            m = re.search(r'vmcnt\((\d+)\)', c.text)
            if m:
                k = int(m.group(1))
                while len(vm) > k: vm.pop(0)
            continue
        touched = set(c.src) | set(c.dst)
        for q, nm in ((lg, 'lgkm'), (vm, 'vm')):
            for d in q:
                if d & touched:
                    probs.append(f'{where} unwaited {nm} result used by [{c.text}]')
                    break
        if c.kind == 'ds': lg.append(set(c.dst))
        elif c.kind == 'smem': lg.append(set(c.dst))
        elif c.kind == 'vmem': vm.append(set(c.dst))
    return probs

class Asm:
    def __init__(self):
        self.items = []
    def __call__(self, s):
        for l in s.strip('\n').split('\n'):
            l = l.strip()
            if not l: continue
            if l.startswith(';'):
                self.items.append(l); continue
            if l.endswith(':'):
                self.items.append(l); continue
            self.items.append(Ins(l))
    def label(self, s): self.items.append(s + ':')
    def comment(self, s): self.items.append('; ' + s)
    def extend(self, other): self.items.extend(other.items)
    def ins(self): return [x for x in self.items if isinstance(x, Ins)]
    def text(self):
        out = []
        for x in self.items:
            if isinstance(x, Ins): out.append('    ' + x.text)
            else: out.append(x)
        return '\n'.join(out) + '\n'
    def mark(self): return len(self.items)
    def since(self, m): return [x for x in self.items[m:] if isinstance(x, Ins)]

def kernel_text(name, body, vgpr, sgpr, accum):
    return f'''.text
.globl {name}
.p2align 8
.type {name},@function
{name}:
{body}.section .rodata,"a"
.p2align 6
.amdhsa_kernel {name}
  .amdhsa_next_free_vgpr {vgpr}
  .amdhsa_next_free_sgpr {sgpr}
  .amdhsa_accum_offset {accum}
  .amdhsa_group_segment_fixed_size 0
  .amdhsa_kernarg_size 104
  .amdhsa_user_sgpr_count 2
  .amdhsa_user_sgpr_kernarg_segment_ptr 1
  .amdhsa_system_sgpr_workgroup_id_x 1
.end_amdhsa_kernel
'''

def header():
    return open('cdna_kernels/%s.s.ref' % NAME).read().split('; Override launch geometry')[0]

def file_text(launches, kernels):
    s = header()
    for (k, g, b, lds) in launches:
        s += f'; @launch kernel={k} grid=({g},1,1) block=({b},1,1) lds={lds}\n'
    s += '.amdgcn_target "amdgcn-amd-amdhsa--gfx950"\n'
    s += '.text\n.p2align 8\ncode_begin:\n'
    s += ''.join(kernels)
    s += '.text\ncode_end:\n    s_endpgm\n'
    return s

def srd(a, dst, lo, nbytes):
    a(f's_mov_b32 s{dst}, s{lo}')
    a(f's_and_b32 s{dst+1}, s{lo+1}, 0xffff')
    a(f's_mov_b32 s{dst+2}, {nbytes}')
    a(f's_mov_b32 s{dst+3}, 0x00020000')

class State:
    def __init__(self):
        self.lg = []
        self.vm = []
    def copy(self):
        s = State(); s.lg = list(self.lg); s.vm = list(self.vm); return s
    def sig(self):
        return (tuple(tuple(sorted(d)) for d in self.lg), tuple((tuple(sorted(d)), t) for d, t in self.vm))

def resolve(items, st):
    waits = {}
    for idx, c in enumerate(items):
        if isinstance(c, str): continue
        if isinstance(c, tuple):
            if c[0] == 'waitvm':
                tags = c[1] if isinstance(c[1], (list, tuple, set)) else [c[1]]
                last = -1
                for i, (d, t) in enumerate(st.vm):
                    if t in tags: last = i
                n = len(st.vm) - 1 - last if last >= 0 else None
                if n is not None:
                    n = min(n, 63)
                    waits.setdefault(idx, [None, None])[1] = n
                    del st.vm[:len(st.vm) - n]
                else:
                    waits.setdefault(idx, [None, None])
            continue
        if c.op == 's_waitcnt':
            m = re.search(r'lgkmcnt\((\d+)\)', c.text)
            if m:
                k = int(m.group(1));
                if len(st.lg) > k: del st.lg[:len(st.lg) - k]
            m = re.search(r'vmcnt\((\d+)\)', c.text)
            if m:
                k = int(m.group(1))
                if len(st.vm) > k: del st.vm[:len(st.vm) - k]
            continue
        touched = set(c.src) | set(c.dst)
        if touched:
            last = -1
            for i, d in enumerate(st.lg):
                if d & touched: last = i
            if last >= 0:
                n = min(len(st.lg) - 1 - last, 15)
                waits.setdefault(idx, [None, None])[0] = n
                del st.lg[:len(st.lg) - n]
            last = -1
            for i, (d, t) in enumerate(st.vm):
                if d & touched: last = i
            if last >= 0:
                n = min(len(st.vm) - 1 - last, 63)
                waits.setdefault(idx, [None, None])[1] = n
                del st.vm[:len(st.vm) - n]
        if c.kind in ('ds', 'smem'):
            st.lg.append(frozenset(c.dst))
            if c.kind == 'smem' : pass
        elif c.kind == 'vmem':
            st.vm.append((frozenset(c.dst), getattr(c, 'tag', None)))
    return waits

def merge_waits(w1, w2):
    out = {}
    for k in set(w1) | set(w2):
        a = w1.get(k, [None, None]); b = w2.get(k, [None, None])
        out[k] = [x if y is None else (y if x is None else min(x, y)) for x, y in zip(a, b)]
    return out

def apply_waits(items, waits):
    out = []
    for idx, c in enumerate(items):
        w = waits.get(idx)
        if w and (w[0] is not None or w[1] is not None):
            s = 's_waitcnt'
            if w[1] is not None: s += f' vmcnt({w[1]})'
            if w[0] is not None: s += f' lgkmcnt({w[0]})'
            out.append(Ins(s))
        if not isinstance(c, tuple): out.append(c)
    return out

def resolve_linear(items, st):
    return apply_waits(items, resolve(items, st))

def resolve_loop(items, st):
    s1 = st.copy(); w1 = resolve(items, s1)
    s2 = s1.copy(); w2 = resolve(items, s2)
    s3 = s2.copy(); w3 = resolve(items, s3)
    assert s2.sig() == s3.sig(), 'loop state not stable'
    w = merge_waits(merge_waits(w1, w2), w3)
    st.lg = s3.lg; st.vm = s3.vm
    return apply_waits(items, w)

class TIns(Ins):
    __slots__ = ('tag',)
    def __init__(self, text, tag):
        super().__init__(text); self.tag = tag

class Seg:
    def __init__(self, n):
        self.n = n; self.mf = [None] * n
        self.pre = [[] for _ in range(n)]; self.post = [[] for _ in range(n)]
        self.cost = [0] * n
    def put(self, q, item, cost=4):
        if isinstance(item, str): item = Ins(item)
        self.post[q].append(item); self.cost[q] += cost
    def items(self):
        out = []
        for q in range(self.n):
            out += self.pre[q]
            if self.mf[q] is not None: out.append(Ins(self.mf[q]) if isinstance(self.mf[q], str) else self.mf[q])
            out += self.post[q]
        return out


PROF = False
WS_PROF = 0x3000000
class Prof:
    def __init__(self, kidx, base, n=14):
        self.k = kidx; self.base = base; self.cnt = 0; self.n = n
    def stamp(self, cyc=False, lite=False):
        if not PROF: return []
        import os
        r = self.base + 2 + self.cnt; self.cnt += 1
        if os.environ.get('PROFLITE') and not lite and self.cnt > 1:
            return [Ins(f's_mov_b32 s{r}, 0')]
        assert self.cnt <= self.n
        op = 's_memtime' if cyc else 's_memrealtime'
        return [Ins(f'{op} s[{self.base}:{self.base+1}]'), Ins('s_waitcnt lgkmcnt(0)'), Ins(f's_mov_b32 s{r}, s{self.base}')]
    def store(self, a, ws_lo, wave_sgpr, tmp_s, vtmp, label):
        if not PROF: return
        import os
        a(f's_cmp_lg_u32 s{wave_sgpr}, {int(os.environ.get("PROFWAVE", "0"))}')
        a(f's_cbranch_scc1 {label}')
        a(f's_add_u32 s{tmp_s}, s{ws_lo}, {WS_PROF + self.k * 256 * 128}')
        a(f's_addc_u32 s{tmp_s+1}, s{ws_lo+1}, 0')
        a(f's_and_b32 s{tmp_s+1}, s{tmp_s+1}, 0xffff')
        a(f's_mov_b32 s{tmp_s+2}, {256*128}')
        a(f's_mov_b32 s{tmp_s+3}, 0x00020000')
        a(f's_lshl_b32 s{self.base+1}, s2, 7')
        a(f'v_mov_b32 v{vtmp+1}, s{self.base+1}')
        for i in range(self.cnt):
            a(f'v_mov_b32 v{vtmp}, s{self.base+2+i}')
            a(f'buffer_store_dword v{vtmp}, v{vtmp+1}, s[{tmp_s}:{tmp_s+3}], 0 offen offset:{4*i}')
            a('s_nop 1')

def code_prefetch(a, name, nthreads, sbase, vtmp, vtmp2, dsts, lo='code_begin', hi='code_end'):
    a(f's_getpc_b64 s[{sbase}:{sbase+1}]')
    a.items.append(f'{name}_pc:')
    a(f's_sub_u32 s{sbase}, s{sbase}, {name}_pc-{lo}')
    a(f's_subb_u32 s{sbase+1}, s{sbase+1}, 0')
    a(f'v_lshlrev_b32 v{vtmp}, 7, v0')
    for k, d in enumerate(dsts):
        if k > 0: a(f'v_add_u32 v{vtmp}, {nthreads*128}, v{vtmp}')
        a(f'v_min_u32 v{vtmp2}, {hi}-{lo}-4, v{vtmp}')
        a(f'global_load_dword {d}, v{vtmp2}, s[{sbase}:{sbase+1}]')
```

```python
from asmlib import *
import asmlib
import math, struct, os
EXP = os.environ.get('K2EXP', '').split(',')
DMAF = os.environ.get('DMAF', '')
PSEL = os.environ.get('PSEL', 'loop')

def f2u(x): return struct.unpack('<I', struct.pack('<f', x))[0]

WS_MOD = 0
PREFETCH = True
L2PF = True
PARAM = 158720
DOWT = True
STASH = os.environ.get('STASH', '0') == '1'
WTBUF = 101376 + 16384
WS_W1F = 0x1A00000
WS_W2F = 0x1C00000
sWT, sWTs, sWTf, sWTsrc, sWTdst, sWTnt = 57, 58, 59, 60, 61, 62
sFLG = 92
WS_PART = 0x100000
WS_DBG = 0x2000000
CSCALE = math.log2(math.e) / 16.0
U0 = 72.0
THR = 0x71800000

KBUF = [0, 33792]
VBUF = [67584, 102400]
WQSLOT = [33792, 67584, 0]
HBUF = 101376
QBUF = 67584
XAREA = 67584
STAT = 137216
WOSLOT = [0, 32768, 67584, 100352]
LDS_BYTES = 163840

sX, sK, sV, sWQ, sWO, sMOD, sPART, sDBG = 16, 20, 24, 28, 32, 36, 40, 44
sW, sA, sKG, sG, sRB = 48, 49, 50, 51, 52
sT0, sT1, sT2, sT3 = 53, 54, 55, 56
sKoff, sKoff2, sVoff, sVoff2 = 57, 58, 59, 60
sKdst, sVdst = 61, 62
sCnt, sThr, sMask, sSite = 63, 64, 65, 66
sWqOff, sWoOff = 67, 68
sTS = 70

vLane, vC, vG4, vR, vCq = 1, 2, 3, 4, 5
vKrd, vVrdE, vVrdO, vDmaK, vDmaV = 8, 9, 10, 11, 12
vT0, vT1, vT2 = 13, 14, 15
vL, vLt, vPt, vFr, vNegm, vP, vS, vO = 16, 20, 24, 32, 48, 64, 96, 128
def S_(kt, lr): return vS + (kt * 4 + lr) * 4
def P_(b, lr): return vP + (b * 4 + lr) * 4
def NEGM(lr): return vNegm + lr * 4
def OK_(dt, lr): return vO + (dt * 2 + lr) * 4
def OG_(dt, lr): return (dt * 2 + (lr - 2)) * 4
def Q_(lr, ds): return 128 + (lr * 8 + ds) * 4
def FR(f): return vFr + (f & 3) * 4
MF = 'v_mfma_f32_16x16x32_bf16'

def oreg(dt, lr):
    return vr(OK_(dt, lr), 4) if lr < 2 else ar(OG_(dt, lr), 4)

def allreduce_g4(a, v, t, op):
    a(f'v_mov_b32 v{t}, v{v}')
    a('s_nop 1')
    a(f'v_permlane16_swap_b32 v{v}, v{t}')
    a('s_nop 1')
    a(f'{op} v{v}, v{v}, v{t}')
    a(f'v_mov_b32 v{t}, v{v}')
    a('s_nop 1')
    a(f'v_permlane32_swap_b32 v{v}, v{t}')
    a('s_nop 1')
    a(f'{op} v{v}, v{v}, v{t}')

def gen_k2(dbg=None, stop=None):
    a = Asm()
    st = State()
    def flush(items):
        a.items.extend(resolve_linear(items, st))
    def L(text):
        x = Asm(); x(text); return x.items
    pro = Asm()
    p = pro
    p('s_cmp_ge_u32 s2, 256')
    p('s_cbranch_scc1 K2_end')
    pf = Prof(1, 72, 14)
    p.items += pf.stamp()
    p('s_load_dwordx4 s[4:7], s[0:1], 0')
    p('s_load_dwordx4 s[8:11], s[0:1], 16')
    p('s_load_dwordx2 s[12:13], s[0:1], 32')
    p('s_load_dwordx2 s[14:15], s[0:1], 96')
    p('s_load_dwordx4 s[96:99], s[0:1], 64')
    p('s_load_dwordx2 s[100:101], s[0:1], 88')
    p('s_load_dwordx4 s[88:91], s[0:1], 48')
    p(f'v_and_b32 v{vLane}, 63, v0')
    p(f'v_lshrrev_b32 v{vT0}, 6, v0')
    p(f'v_and_b32 v{vC}, 15, v0')
    p(f'v_readfirstlane_b32 s{sW}, v{vT0}')
    p(f'v_lshrrev_b32 v{vG4}, 4, v{vLane}')
    p(f'v_bfe_u32 v{vR}, v0, 2, 2')
    p(f'v_and_b32 v{vCq}, 3, v0')
    p(f's_and_b32 s{sG}, s2, 7')
    p(f's_lshr_b32 s{sRB}, s2, 3')
    p(f's_and_b32 s{sA}, s{sW}, 1')
    p(f's_lshr_b32 s{sKG}, s{sW}, 1')
    p(f's_mov_b32 s{sMask}, 0xffff0000')
    p(f's_mov_b32 s{sThr}, {THR}')
    p('s_waitcnt lgkmcnt(0)')
    srd(p, sX, 4, 1835008)
    p(f's_lshl_b32 s{sT0}, s{sG}, 20')
    p(f's_add_u32 s6, s6, s{sT0}'); p('s_addc_u32 s7, s7, 0')
    p(f's_add_u32 s8, s8, s{sT0}'); p('s_addc_u32 s9, s9, 0')
    srd(p, sK, 6, 1 << 20); srd(p, sV, 8, 1 << 20)
    srd(p, sWQ, 10, 448 * 8192)
    p(f's_mul_i32 s{sT0}, s{sG}, 458752')
    p(f's_add_u32 s12, s12, s{sT0}'); p('s_addc_u32 s13, s13, 0')
    srd(p, sWO, 12, 458752)
    srd(p, sMOD, 14, 10752)
    p(f's_lshl_b32 s{sT0}, s{sRB}, 3'); p(f's_add_u32 s{sT0}, s{sT0}, s{sG}')
    p(f's_mul_i32 s{sT0}, s{sT0}, 57344'); p(f's_add_u32 s{sT0}, s{sT0}, {WS_PART}')
    p(f's_add_u32 s4, s14, s{sT0}'); p('s_addc_u32 s5, s15, 0')
    srd(p, sPART, 4, 57344)
    if dbg:
        p(f's_add_u32 s4, s14, {WS_DBG}'); p('s_addc_u32 s5, s15, 0')
        srd(p, sDBG, 4, 0x4000000)
    srd(p, sFLG, 100, 256)
    sC, sWM = 4, 8
    WR, CR = 184, 240
    p('s_cmp_ge_u32 s2, 42'); p('s_cbranch_scc1 K2_noprod1')
    srd(p, sC, 96, 896); srd(p, sWM, 98, 448 * 5376)
    p('v_lshrrev_b32 v8, 3, v0')
    p('v_and_b32 v9, 7, v0')
    p('v_mul_u32_u24 v10, 5376, v8')
    p('v_lshl_add_u32 v10, v9, 4, v10')
    p('v_lshlrev_b32 v11, 1, v8')
    p(f's_lshl_b32 s{sT0}, s2, 7')
    flush(p.items); p = Asm()
    for t in range(14):
        p(f'buffer_load_ushort v{CR+t}, v11, s[{sC}:{sC+3}], 0 offen offset:{t*64}')
    for t in range(14):
        p(f'buffer_load_dwordx4 {vr(WR+4*t,4)}, v10, s[{sWM}:{sWM+3}], s{sT0} offen')
        if t < 13: p(f's_add_u32 s{sT0}, s{sT0}, 172032')
    prod_loads = p.items
    a.items.extend(prod_loads)
    a.label('K2_noprod1')
    p = Asm()
    p(f's_lshl_b32 s{sT0}, s{sRB}, 6'); p(f's_lshl_b32 s{sT1}, s{sW}, 4'); p(f's_add_u32 s{sT0}, s{sT0}, s{sT1}')
    p(f'v_add_u32 v{vT0}, s{sT0}, v{vC}')
    p(f'v_mul_u32_u24 v{vT0}, 896, v{vT0}')
    p(f'v_lshl_add_u32 v{vT0}, v{vG4}, 4, v{vT0}')
    XR = 128
    for ks in range(14):
        p(f'buffer_load_dwordx4 {vr(XR+4*ks,4)}, v{vT0}, s[{sX}:{sX+3}], 0 offen offset:{ks*64}')
    flush(p.items)
    p = Asm()
    p('s_cmp_ge_u32 s2, 42'); p('s_cbranch_scc1 K2_noprod2')
    p(f's_mov_b32 s{sT0}, {0x3fb8aa3b}')
    p('s_waitcnt vmcnt(28)')
    for t in range(14): p(f'v_lshlrev_b32 v{CR+t}, 16, v{CR+t}')
    SI = 100
    for t in range(14): p(f'v_mul_f32 v{SI+t}, s{sT0}, v{CR+t}')
    for t in range(14): p(f'v_exp_f32 v{SI+t}, -v{SI+t}')
    for t in range(14): p(f'v_add_f32 v{SI+t}, 1.0, v{SI+t}')
    for t in range(14): p(f'v_rcp_f32 v{SI+t}, v{SI+t}')
    for t in range(14): p(f'v_mul_f32 v{SI+t}, v{CR+t}, v{SI+t}')
    for t in range(14): p(f'v_cvt_pk_bf16_f32 v{SI+t}, 0, v{SI+t}')
    for e in range(8): p(f'v_mov_b32 v{16+e}, 0')
    for t in range(14):
        p(f's_waitcnt vmcnt({14 + 13 - t})')
        for d in range(4):
            w = WR + 4*t + d
            p(f'v_lshlrev_b32 v12, 16, v{w}')
            p(f'v_and_b32 v13, s{sMask}, v{w}')
            p(f'v_fmac_f32 v{16+2*d}, v{SI+t}, v12')
            p(f'v_fmac_f32 v{17+2*d}, v{SI+t}, v13')
    p('v_lshrrev_b32 v8, 3, v0'); p('v_and_b32 v9, 7, v0')
    p('v_lshlrev_b32 v12, 8, v8'); p('v_lshl_add_u32 v12, v9, 5, v12')
    p(f'v_add_u32 v12, {HBUF}, v12')
    p('ds_write_b128 v12, v[16:19]'); p('ds_write_b128 v12, v[20:23] offset:16')
    p('s_waitcnt lgkmcnt(0)')
    p('s_barrier')
    p(f's_cmp_lg_u32 s{sW}, 0'); p('s_cbranch_scc1 K2_noprod2')
    p(f'v_lshlrev_b32 v12, 2, v{vLane}'); p(f'v_add_u32 v12, {HBUF}, v12')
    for r in range(32): p(f'ds_read_b32 v{16+r}, v12 offset:{r*256}')
    p('s_waitcnt lgkmcnt(0)')
    for stp in (16, 8, 4, 2, 1):
        for r in range(stp): p(f'v_add_f32 v{16+r}, v{16+r}, v{16+r+stp}')
    p('v_cvt_pk_bf16_f32 v16, 0, v16')
    p(f's_lshl_b32 s{sT0}, s2, 6')
    p(f'v_add_u32 v12, s{sT0}, v{vLane}')
    p('v_add_f32 v17, 1.0, v16'); p('v_cvt_pk_bf16_f32 v17, 0, v17')
    p('v_subrev_u32 v18, 448, v12'); p('v_subrev_u32 v19, 1792, v12'); p('v_min_u32 v18, v18, v19')
    p('v_cmp_gt_u32 vcc, 448, v18')
    p('v_lshlrev_b32 v12, 2, v12')
    p('s_nop 0')
    p('v_cndmask_b32 v16, v16, v17, vcc')
    p(f's_mov_b32 s{sT0}, 1.0'); p('s_cmp_lt_u32 s2, 14'); p(f's_cmov_b32 s{sT0}, {f2u(CSCALE):#x}')
    p(f'v_mul_f32 v16, s{sT0}, v16')
    p(f'buffer_store_dword v16, v12, s[{sMOD}:{sMOD+3}], 0 offen sc0 sc1')
    p('s_cmp_ge_u32 s2, 14'); p('s_cbranch_scc1 K2_noprod2')
    p('s_waitcnt vmcnt(0)')
    p('v_mov_b32 v12, 0'); p('v_mov_b32 v13, 1')
    p(f'v_cmp_eq_u32 vcc, 0, v{vLane}')
    p('s_and_saveexec_b64 s[4:5], vcc')
    p(f'buffer_atomic_add v13, v12, s[{sFLG}:{sFLG+3}], 0 offen sc1')
    p('s_mov_b64 exec, s[4:5]')
    p.label('K2_noprod2')
    a.items.extend(p.items)
    p = Asm()
    vWqD = 120
    p(f'v_lshlrev_b32 v{vWqD}, 4, v{vLane}')
    for jj in range(1, 8):
        p(f'v_add_u32 v{vWqD+jj}, {jj*8192}, v{vWqD}')
    p(f's_lshl_b32 s{sWqOff}, s{sW}, 16'); p(f's_lshl_b32 s{sT0}, s{sG}, 10'); p(f's_add_u32 s{sWqOff}, s{sWqOff}, s{sT0}')
    p(f's_mul_i32 s{sT3}, s{sW}, {8*1056}')
    def wq_dma(ks, jj, vWqD=vWqD):
        r = []
        r.append(Ins(f's_add_u32 m0, s{sT3}, {WQSLOT[ks%3] + jj*1056}'))
        if jj == 0 and ks > 0:
            r.append(Ins(f's_add_u32 s{sWqOff}, s{sWqOff}, {32*8192}'))
        else:
            r.append(Ins('s_nop 0'))
        r.append(TIns(f'buffer_load_dwordx4 v{vWqD+jj}, s[{sWQ}:{sWQ+3}], s{sWqOff} offen lds', f'wq{ks}'))
        return r
    for ks in range(3):
        for jj in range(8): p.items += wq_dma(ks, jj)
    flush(p.items)
    if DOWT:
        p = Asm()
        p(f's_mul_i32 s{sWT}, s2, 3'); p(f's_add_u32 s{sWT}, s{sWT}, s{sW}'); p(f's_sub_u32 s{sWT}, s{sWT}, 1')
        p(f's_cmp_lg_u32 s{sW}, 0'); p('s_cbranch_scc1 K2_wt_go')
        p(f's_sub_u32 s{sT0}, s2, 64'); p(f's_add_u32 s{sWT}, s{sT0}, 768')
        p(f's_cmp_lt_u32 s{sT0}, 16'); p('s_cbranch_scc1 K2_wt_go')
        p(f's_mov_b32 s{sWT}, -1'); p('s_branch K2_wt_skip1')
        p.label('K2_wt_go')
        p(f's_cmp_lt_u32 s{sWT}, 392')
        p('s_cselect_b32 s4, s88, s90'); p('s_cselect_b32 s5, s89, s91')
        p(f's_mov_b32 s{sWTs}, 896'); p(f's_cmov_b32 s{sWTs}, 3584')
        p(f's_cselect_b32 s{sT2}, 28, 7')
        p(f's_mov_b32 s{sT1}, 9363'); p(f's_cmov_b32 s{sT1}, 2341')
        p(f's_cselect_b32 s{sT0}, 0, 392')
        p(f's_mov_b32 s{sWTnt}, 1024'); p(f's_cmov_b32 s{sWTnt}, 14336')
        p(f's_mov_b32 s{sWTdst}, {WS_W2F}'); p(f's_cmov_b32 s{sWTdst}, {WS_W1F}')
        p(f's_cselect_b32 s{sWTf}, 10, 12')
        p(f's_sub_u32 s{sT0}, s{sWT}, s{sT0}')
        p(f's_mul_i32 s{sT1}, s{sT0}, s{sT1}'); p(f's_lshr_b32 s{sT1}, s{sT1}, 16')
        p(f's_mul_i32 s{sT2}, s{sT1}, s{sT2}'); p(f's_sub_u32 s{sT2}, s{sT0}, s{sT2}')
        p('s_and_b32 s5, s5, 0xffff'); p(f's_mov_b32 s6, {448*3584}'); p('s_mov_b32 s7, 0x00020000')
        p(f's_mul_i32 s{sT0}, s{sT1}, s{sWTs}'); p(f's_lshl_b32 s{sT0}, s{sT0}, 5'); p(f's_lshl_b32 s{sWTsrc}, s{sT2}, 7'); p(f's_add_u32 s{sWTsrc}, s{sWTsrc}, s{sT0}')
        p(f's_mul_i32 s{sT0}, s{sT2}, 56'); p(f's_add_u32 s{sT0}, s{sT0}, s{sT1}')
        p(f's_lshl_b32 s{sT0}, s{sT0}, s{sWTf}'); p(f's_add_u32 s{sWTdst}, s{sWTdst}, s{sT0}')
        p(f'v_lshrrev_b32 v8, 3, v{vLane}'); p(f'v_mul_lo_u32 v8, v8, s{sWTs}')
        p(f'v_bfe_u32 v9, v{vLane}, 1, 2'); p(f'v_xor_b32 v9, v9, v{vG4}'); p('v_lshl_add_u32 v8, v9, 5, v8')
        p(f'v_and_b32 v9, 1, v{vLane}'); p('v_lshl_add_u32 v8, v9, 4, v8')
        p(f's_lshl_b32 s{sT1}, s{sW}, 12'); p(f's_add_u32 s{sT1}, s{sT1}, {WTBUF}')
        p(f's_lshl_b32 s{sT2}, s{sWTs}, 3')
        for rg in range(4):
            p(f's_add_u32 m0, s{sT1}, {rg*1024}')
            p('s_nop 0')
            p(f'buffer_load_dwordx4 v8, s[4:7], s{sWTsrc} offen lds')
            if rg < 3: p(f's_add_u32 s{sWTsrc}, s{sWTsrc}, s{sT2}')
        p.label('K2_wt_skip1')
        a.items.extend(p.items)
    if L2PF:
        p = Asm()
        p(f's_cmp_eq_u32 s{sW}, 3'); p('s_cbranch_scc0 K2_pfend')
        for k in range(2):
            p(f'v_add_u32 v9, {64*k}, v{vLane}')
            p('v_min_u32 v9, 111, v9')
            p('v_lshrrev_b32 v10, 3, v9'); p('v_lshlrev_b32 v10, 13, v10')
            p('v_and_b32 v11, 7, v9'); p('v_lshl_add_u32 v10, v11, 7, v10')
            p(f's_mul_i32 s{sT0}, s{sRB}, {14*8192}'); p(f's_lshl_b32 s{sT1}, s{sG}, 10'); p(f's_add_u32 s{sT0}, s{sT0}, s{sT1}')
            p(f'buffer_load_dword v{252+k}, v10, s[{sWQ}:{sWQ+3}], s{sT0} offen')
        p.label('K2_pfend')
        if PREFETCH:
            p(f's_cmp_eq_u32 s{sW}, 2'); p('s_cbranch_scc0 K2_pfend2')
            p('s_getpc_b64 s[70:71]')
            p.items.append('K2_pc:')
            p('s_sub_u32 s70, s70, K2_pc-code_begin'); p('s_subb_u32 s71, s71, 0')
            p(f'v_and_b32 v9, 15, v{vLane}'); p('v_lshlrev_b32 v9, 7, v9')
            p(f's_lshl_b32 s{sT0}, s{sRB}, 11')
            p(f'v_add_u32 v9, s{sT0}, v9')
            p('v_min_u32 v9, code_end-code_begin-4, v9')
            p('global_load_dword v252, v9, s[70:71]')
            p.label('K2_pfend2')
        a.items.extend(p.items)
    p = Asm()
    XF = 16
    for ks in range(14):
        for d in range(4):
            r = XR + 4*ks + d
            p(f'v_lshlrev_b32 v{XF+8*ks+2*d}, 16, v{r}')
            p(f'v_and_b32 v{XF+8*ks+2*d+1}, s{sMask}, v{r}')
            if XF+8*ks+2*d+1 >= vWqD - 1 and False: pass
    p(f'v_pk_add_f32 v[8:9], v[{XF}:{XF+1}], v[{XF+2}:{XF+3}]')
    p(f'v_pk_add_f32 v[10:11], v[{XF+4}:{XF+5}], v[{XF+6}:{XF+7}]')
    for i in range(4, 56):
        acc = 8 + 2 * (i & 1)
        p(f'v_pk_add_f32 v[{acc}:{acc+1}], v[{acc}:{acc+1}], v[{XF+2*i}:{XF+2*i+1}]')
    p('v_pk_add_f32 v[8:9], v[8:9], v[10:11]')
    p('v_add_f32 v8, v8, v9')
    allreduce_g4(p, 8, 9, 'v_add_f32')
    p(f'v_mul_f32 v8, {f2u(1.0/448):#x}, v8')
    for i in range(56):
        p(f'v_pk_add_f32 v[{XF+2*i}:{XF+2*i+1}], v[{XF+2*i}:{XF+2*i+1}], v[8:9] op_sel_hi:[1,0] neg_lo:[0,1] neg_hi:[0,1]')
    p(f'v_pk_mul_f32 v[10:11], v[{XF}:{XF+1}], v[{XF}:{XF+1}]')
    p(f'v_pk_mul_f32 v[12:13], v[{XF+2}:{XF+3}], v[{XF+2}:{XF+3}]')
    for i in range(2, 56):
        acc = 10 + 2 * (i & 1)
        p(f'v_pk_fma_f32 v[{acc}:{acc+1}], v[{XF+2*i}:{XF+2*i+1}], v[{XF+2*i}:{XF+2*i+1}], v[{acc}:{acc+1}]')
    p('v_pk_add_f32 v[10:11], v[10:11], v[12:13]')
    p('v_add_f32 v10, v10, v11')
    allreduce_g4(p, 10, 11, 'v_add_f32')
    p(f'v_mov_b32 v11, {f2u(1e-5):#x}')
    p(f'v_fmac_f32 v11, {f2u(1.0/448):#x}, v10')
    p('v_rsq_f32 v10, v11')
    p('s_nop 0')
    for i in range(56):
        p(f'v_pk_mul_f32 v[{XF+2*i}:{XF+2*i+1}], v[{XF+2*i}:{XF+2*i+1}], v[10:11] op_sel_hi:[1,0]')
    flush(p.items + pf.stamp())
    if STASH:
        p = Asm()
        vSB, vSD = 240, 244
        p(f'v_lshl_add_u32 v13, v{vG4}, 2, v{vR}')
        p('v_mul_u32_u24 v13, 1056, v13')
        p(f'v_lshl_add_u32 v13, v{vCq}, 3, v13')
        p(f's_lshl_b32 s{sT0}, s{sA}, 9'); p(f's_lshl_b32 s{sT1}, s{sKG}, 8'); p(f's_add_u32 s{sT0}, s{sT0}, s{sT1}')
        p(f'v_add_u32 v13, s{sT0}, v13')
        for s3 in range(3): p(f'v_add_u32 v{vSB+s3}, {WQSLOT[s3]}, v13')
        p(f'v_lshlrev_b32 v{vSD}, 4, v{vLane}')
        for jj in range(1, 8): p(f'v_add_u32 v{vSD+jj}, {jj*8192}, v{vSD}')
        for tau in range(8):
            p('s_waitcnt lgkmcnt(0)')
            p.items.append(('waitvm', f'wq{tau}'))
            p('s_barrier')
            rd = []
            for e in range(8):
                r = (tau * 8 + e) * 4
                rd.append([Ins(f'ds_read_b64_tr_b16 a[{r}:{r+1}], v{vSB + tau % 3} offset:{e*32}'),
                           Ins(f'ds_read_b64_tr_b16 a[{r+2}:{r+3}], v{vSB + tau % 3} offset:{16896 + e*32}')])
            for e in range(8):
                p.items += rd[e]
                if tau >= 1: p.items += wq_dma(tau + 2, e, vSD)
        p('s_waitcnt lgkmcnt(0)')
        p('s_barrier')
        for jj in range(8): p.items += wq_dma(10, jj, vSD)
        flush(p.items + pf.stamp())
    else:
        flush(pf.stamp())
    if DOWT:
        p = Asm()
        p(f's_cmp_eq_u32 s{sWT}, -1'); p('s_cbranch_scc1 K2_wt_skip2')
        p('s_waitcnt vmcnt(0)')
        p(f'v_and_b32 v8, 1, v{vG4}'); p(f'v_lshl_add_u32 v8, v8, 2, v{vR}')
        p(f'v_lshrrev_b32 v9, 1, v{vG4}'); p('v_lshlrev_b32 v9, 10, v9')
        p('v_lshl_add_u32 v9, v8, 7, v9'); p(f'v_lshl_add_u32 v9, v{vCq}, 3, v9')
        p(f's_lshl_b32 s{sT1}, s{sW}, 12'); p(f's_add_u32 s{sT1}, s{sT1}, {WTBUF}')
        p(f'v_add_u32 v9, s{sT1}, v9')
        p('v_lshrrev_b32 v8, 1, v8')
        for nt in range(4):
            p(f'v_xor_b32 v10, {nt}, v8'); p('v_lshl_add_u32 v10, v10, 5, v9')
            p(f'ds_read_b64_tr_b16 v[{128+4*nt}:{129+4*nt}], v10')
            p(f'ds_read_b64_tr_b16 v[{130+4*nt}:{131+4*nt}], v10 offset:2048')
        p(f's_add_u32 s4, s14, 0'); p('s_addc_u32 s5, s15, 0'); p('s_and_b32 s5, s5, 0xffff'); p(f's_mov_b32 s6, {WS_W2F + 392*4096}'); p('s_mov_b32 s7, 0x00020000')
        p(f'v_lshlrev_b32 v10, 4, v{vLane}')
        p('s_waitcnt lgkmcnt(0)')
        for nt in range(4):
            p(f'buffer_store_dwordx4 {vr(128+4*nt,4)}, v10, s[4:7], s{sWTdst} offen')
            if nt < 3: p(f's_add_u32 s{sWTdst}, s{sWTdst}, s{sWTnt}')
        p.label('K2_wt_skip2')
        a.items.extend(p.items)
    p = Asm()
    p(f's_cmp_lg_u32 s{sW}, 0'); p('s_cbranch_scc1 K2_gotpar')
    p('v_mov_b32 v12, 0')
    p.label('K2_poll')
    p(f'buffer_load_dword v13, v12, s[{sFLG}:{sFLG+3}], 0 offen sc0 sc1')
    p('s_waitcnt vmcnt(0)')
    p(f'v_readfirstlane_b32 s{sT0}, v13')
    p('s_nop 3')
    p(f's_cmp_ge_u32 s{sT0}, 14'); p('s_cbranch_scc1 K2_polled')
    p('s_sleep 4')
    p('s_branch K2_poll')
    p.label('K2_polled')
    p(f'v_lshlrev_b32 v12, 4, v{vLane}')
    for k in range(4):
        p(f'buffer_load_dwordx4 {vr(128+4*k,4)}, v12, s[{sMOD}:{sMOD+3}], 0 offen offset:{k*1024} sc0 sc1')
    p(f'v_add_u32 v13, {PARAM}, v12')
    p('s_waitcnt vmcnt(0)')
    for k in range(4):
        p(f'ds_write_b128 v13, {vr(128+4*k,4)} offset:{k*1024}')
    p('s_waitcnt lgkmcnt(0)')
    p.label('K2_gotpar')
    p('s_barrier')
    a.items.extend(p.items)
    p = Asm()
    p(f's_mul_i32 s{sT0}, s{sW}, 14336'); p(f's_add_u32 s{sT0}, s{sT0}, {HBUF}')
    p(f'v_and_b32 v12, 1, v{vG4}'); p('v_lshlrev_b32 v12, 9, v12')
    p(f'v_lshl_add_u32 v12, v{vC}, 4, v12')
    p(f'v_lshrrev_b32 v13, 1, v{vG4}'); p('v_lshl_add_u32 v12, v13, 3, v12')
    p(f'v_add_u32 v12, s{sT0}, v12')
    p(f'v_lshlrev_b32 v13, 5, v{vG4}'); p(f'v_add_u32 v13, {PARAM}, v13')
    PS = [128, 144, 160, 176]
    def par_read(ks):
        b = PS[ks & 3]
        return [Ins(f'ds_read_b128 {vr(b,4)}, v13 offset:{1792+ks*128}'), Ins(f'ds_read_b128 {vr(b+4,4)}, v13 offset:{1792+ks*128+16}'),
                Ins(f'ds_read_b128 {vr(b+8,4)}, v13 offset:{ks*128}'), Ins(f'ds_read_b128 {vr(b+12,4)}, v13 offset:{ks*128+16}')]
    for ks in range(3): p.items += par_read(ks)
    for ks in range(14):
        if ks + 3 < 14: p.items += par_read(ks + 3)
        b = PS[ks & 3]
        for i in range(4):
            x = XF + 8*ks + 2*i
            p(f'v_pk_fma_f32 v[{x}:{x+1}], v[{x}:{x+1}], v[{b+2*i}:{b+2*i+1}], v[{b+8+2*i}:{b+8+2*i+1}]')
        for i in range(4):
            x = XF + 8*ks + 2*i
            p(f'v_cvt_pk_bf16_f32 v{XF+8*ks+i}, v{x}, v{x+1}')
        p(f'ds_write_b64 v12, v[{XF+8*ks}:{XF+8*ks+1}] offset:{ks*1024}')
        p(f'ds_write_b64 v12, v[{XF+8*ks+2}:{XF+8*ks+3}] offset:{ks*1024+256}')
    flush(p.items + pf.stamp() + (pf.stamp(True) if PSEL == 'qp' else []))

    q = Asm()
    q(f'v_lshl_add_u32 v13, v{vG4}, 2, v{vR}')
    q('v_mul_u32_u24 v13, 1056, v13')
    q(f'v_lshl_add_u32 v13, v{vCq}, 3, v13')
    q(f's_lshl_b32 s{sT0}, s{sA}, 9'); q(f's_lshl_b32 s{sT1}, s{sKG}, 8'); q(f's_add_u32 s{sT0}, s{sT0}, s{sT1}')
    q(f'v_add_u32 v13, s{sT0}, v13')
    for s3 in range(3):
        q(f'v_add_u32 v{8+s3}, {WQSLOT[s3]}, v13')
    q(f'v_lshlrev_b32 v11, 4, v{vLane}')
    vWqD2 = 96
    for jj in range(8):
        q(f'v_add_u32 v{vWqD2+jj}, {jj*8192}, v11')
    q(f'v_add_u32 v11, {HBUF}, v11')
    vDmaKq = 14
    q(f'v_lshrrev_b32 v15, 5, v{vLane}')
    q(f'v_and_b32 v{vDmaKq}, 31, v{vLane}')
    q(f'v_xor_b32 v{vDmaKq}, v{vDmaKq}, v15')
    q(f'v_lshlrev_b32 v{vDmaKq}, 4, v{vDmaKq}')
    q(f'v_lshl_add_u32 v{vDmaKq}, v15, 9, v{vDmaKq}')
    q(f's_lshl_b32 s{sKoff}, s{sW}, 13')
    q(f's_add_u32 s{sKoff2}, s{sKoff}, 4096')
    q(f's_mul_i32 s{sKdst}, s{sW}, {8*1056}')
    q(f's_mul_i32 s{sVdst}, s{sW}, {8*1088}')
    q.items.append(Ins('s_waitcnt lgkmcnt(0)'))
    q.items.append(('waitvm', 'wq10' if STASH else 'wq0'))
    q('s_barrier')
    QACC = 128
    def qacc(e, rs): return QACC + (e * 4 + rs) * 4
    BF = [64, 80]
    def a_read(ks, e):
        base = 8 + (ks % 3)
        f = FR(e)
        return [Ins(f'ds_read_b64_tr_b16 v[{f}:{f+1}], v{base} offset:{e*32}'),
                Ins(f'ds_read_b64_tr_b16 v[{f+2}:{f+3}], v{base} offset:{16896 + e*32}')]
    if STASH:
        ORDER = [8, 9, 10, 0, 1, 2, 3, 4, 11, 12, 13, 5, 6, 7]
        def b_read(idx, rs):
            b = BF[idx & 1] + rs * 4
            return [Ins(f'ds_read_b128 {vr(b,4)}, v11 offset:{(rs*14+ORDER[idx])*1024}')]
        def kdma_item(buf, j, vreg, tag):
            so = sKoff2 if j >= 4 else sKoff
            return [Ins(f's_add_u32 m0, s{sKdst}, {KBUF[buf] + (4*1056 if j >= 4 else 0) + (j & 3) * 32}'),
                    Ins('s_nop 0'),
                    TIns(f'buffer_load_dwordx4 v{vreg}, s[{sK}:{sK+3}], s{so} offen offset:{(j&3)*1024} {DMAF} lds', tag)]
        for e in range(3): q.items += a_read(8, e)
        for rs in range(4): q.items += b_read(0, rs)
        q.items += a_read(8, 3)
        flush(q.items)
        segs = [Seg(32) for _ in range(14)]
        def put(G, it, c=4): segs[G // 32].put(G % 32, it, c)
        for idx in range(14):
            ks = ORDER[idx]; s = segs[idx]
            for qq in range(32):
                e = qq >> 2; rs = qq & 3
                c = '0' if idx == 0 else vr(qacc(e, rs), 4)
                A = vr(FR(e), 4) if ks >= 8 else ar((ks * 8 + e) * 4, 4)
                s.mf[qq] = f'{MF} {vr(qacc(e,rs),4)}, {A}, {vr(BF[idx&1]+rs*4,4)}, {c}'
            if idx + 1 < 14:
                for rs in range(4):
                    for it in b_read(idx + 1, rs): put(32 * idx + 2 + 4 * rs, it)
        for idx in (0, 1, 2, 8, 9, 10):
            for e in range(8):
                if idx == 0 and e < 4: continue
                G = 32 * idx + 4 * e - 13
                if idx == 8 and e < 4: G = 32 * 7 + 17 + 2 * e
                for it in a_read(ORDER[idx], e): put(G, it)
        segs[2].post[23] += [Ins('s_waitcnt lgkmcnt(0)'), Ins('s_barrier')]
        segs[7].post[16] += [('waitvm', 'wq13'), Ins('s_barrier')]
        segs[10].post[23] += [Ins('s_waitcnt lgkmcnt(0)'), Ins('s_barrier')]
        segs[13].post[23] += [Ins('s_waitcnt lgkmcnt(0)'), Ins('s_barrier')]
        G = 32 * 2 + 25
        for t in (11, 12, 13):
            for jj in range(8):
                for it in wq_dma(t, jj, vWqD2): put(G, it)
                G += 4
        G = 32 * 10 + 25
        for kb in range(2):
            for jj in range(8):
                for it in kdma_item(kb, jj, vDmaKq, f'k{kb}'): put(G, it)
                if jj == 7:
                    put(G, f's_add_u32 s{sKoff}, s{sKoff}, 32768'); put(G, f's_add_u32 s{sKoff2}, s{sKoff2}, 32768')
                G += 4
        for s in segs: flush(s.items())
    else:
        ORDER = list(range(14))
        def b_read(idx, rs):
            b = BF[idx & 1] + rs * 4
            return [Ins(f'ds_read_b128 {vr(b,4)}, v11 offset:{(rs*14+ORDER[idx])*1024}')]
        def kdma_item(buf, j, vreg, tag):
            so = sKoff2 if j >= 4 else sKoff
            return [Ins(f's_add_u32 m0, s{sKdst}, {KBUF[buf] + (4*1056 if j >= 4 else 0) + (j & 3) * 32}'),
                    Ins('s_nop 0'),
                    TIns(f'buffer_load_dwordx4 v{vreg}, s[{sK}:{sK+3}], s{so} offen offset:{(j&3)*1024} {DMAF} lds', tag)]
        for e in range(3): q.items += a_read(0, e)
        for rs in range(4): q.items += b_read(0, rs)
        q.items += a_read(0, 3)
        flush(q.items)
        segs = []
        for ks in range(14):
            s = Seg(32)
            for qq in range(32):
                e = qq >> 2; rs = qq & 3
                c = '0' if ks == 0 else vr(qacc(e, rs), 4)
                s.mf[qq] = f'{MF} {vr(qacc(e,rs),4)}, {vr(FR(e),4)}, {vr(BF[ks&1]+rs*4,4)}, {c}'
            for e in range(4, 8):
                for it in a_read(ks, e): s.put(4 * (e - 3), it)
            if ks + 1 < 14:
                for rs in range(4):
                    for it in b_read(ks + 1, rs): s.put(2 + 4 * rs, it)
                s.post[23].append(Ins('s_waitcnt lgkmcnt(0)'))
                s.post[23].append(('waitvm', f'wq{ks+1}'))
                s.post[23].append(Ins('s_barrier'))
                for it in a_read(ks + 1, 0) + a_read(ks + 1, 1): s.post[23].append(it)
                for it in a_read(ks + 1, 2): s.put(27, it)
                for it in a_read(ks + 1, 3): s.put(31, it)
            else:
                s.post[23].append(Ins('s_waitcnt lgkmcnt(0)'))
                s.post[23].append(Ins('s_barrier'))
            segs.append(s)
        pos = 0
        for t in range(3, 16):
            pos = max(pos, 32 * (t - 3) + 25)
            for jj in range(8):
                if t < 14: its = wq_dma(t, jj, vWqD2)
                else: its = kdma_item(t - 14, jj, vDmaKq, f'k{t-14}')
                for it in its: segs[pos // 32].put(pos % 32, it)
                if t >= 14 and jj == 7:
                    segs[pos // 32].put(pos % 32, f's_add_u32 s{sKoff}, s{sKoff}, 32768'); segs[pos // 32].put(pos % 32, f's_add_u32 s{sKoff2}, s{sKoff2}, 32768')
                pos = min(pos + 4, 14 * 32 - 1)
        for s in segs: flush(s.items())
    x = Asm()
    x.items += pf.stamp() + (pf.stamp(True) if PSEL == 'qp' else [])
    x('s_nop 7')
    x(f'v_lshrrev_b32 v13, 1, v{vG4}')
    x('v_lshlrev_b32 v13, 8, v13')
    x(f'v_lshl_add_u32 v13, v{vC}, 4, v13')
    x(f'v_and_b32 v12, 1, v{vG4}')
    x('v_lshl_add_u32 v13, v12, 3, v13')
    x(f's_lshl_b32 s{sT0}, s{sA}, 15'); x(f's_lshl_b32 s{sT1}, s{sKG}, 12'); x(f's_add_u32 s{sT0}, s{sT0}, s{sT1}')
    x(f's_add_u32 s{sT0}, s{sT0}, {QBUF}')
    x(f'v_add_u32 v13, s{sT0}, v13')
    tmp = 16
    n = 0
    for e in range(8):
        for rs in range(4):
            r = qacc(e, rs); t = tmp + (n % 8) * 2; n += 1
            x(f'v_cvt_pk_bf16_f32 v{t}, v{r}, v{r+1}')
            x(f'v_cvt_pk_bf16_f32 v{t+1}, v{r+2}, v{r+3}')
            x(f'ds_write_b64 v13, v[{t}:{t+1}] offset:{rs*8192 + (e>>1)*1024 + (e&1)*512}')
    x('s_waitcnt lgkmcnt(0)')
    x('s_barrier')
    x(f'v_lshlrev_b32 v13, 4, v{vLane}')
    x(f's_lshl_b32 s{sT0}, s{sA}, 15'); x(f's_add_u32 s{sT0}, s{sT0}, {QBUF}')
    x(f'v_add_u32 v13, s{sT0}, v13')
    x(f's_lshl_b32 s{sT1}, s{sKG}, 14')
    x(f'v_add_u32 v12, s{sT1}, v13')
    x(f'v_subrev_u32 v13, s{sT1}, v13')
    x('v_add_u32 v13, 16384, v13')
    for lr in range(4):
        for ds in range(8):
            base = 12 if lr < 2 else 13
            x(f'ds_read_b128 {ar(Q_(lr,ds),4)}, v{base} offset:{(lr&1)*8192 + ds*1024}')
    x('s_waitcnt lgkmcnt(0)')
    x.items.append(('waitvm', 'k0'))
    x('s_barrier')
    x(f'v_mov_b32 v{vDmaK}, v{vDmaKq}')
    x(f'v_lshrrev_b32 v15, 5, v{vLane}')
    x(f'v_lshlrev_b32 v14, 1, v15')
    x(f'v_and_b32 v{vDmaV}, 31, v{vLane}')
    x(f'v_xor_b32 v{vDmaV}, v{vDmaV}, v14')
    x(f'v_lshlrev_b32 v{vDmaV}, 4, v{vDmaV}')
    x(f'v_lshl_add_u32 v{vDmaV}, v15, 9, v{vDmaV}')
    x(f'v_lshrrev_b32 v13, 1, v{vC}')
    x('v_mul_u32_u24 v13, 1056, v13')
    x(f'v_and_b32 v14, 1, v{vC}')
    x('v_lshl_add_u32 v13, v14, 9, v13')
    x(f'v_xor_b32 v14, v14, v{vG4}')
    x('v_lshl_add_u32 v13, v14, 4, v13')
    x(f's_mul_i32 s{sT0}, s{sKG}, {16*1056}')
    x(f'v_add_u32 v{vKrd}, s{sT0}, v13')
    x(f'v_lshrrev_b32 v13, 1, v{vR}')
    x(f'v_lshl_add_u32 v13, v{vG4}, 1, v13')
    x('v_mul_u32_u24 v13, 1088, v13')
    x(f'v_and_b32 v14, 1, v{vR}')
    x('v_lshl_add_u32 v13, v14, 9, v13')
    x(f'v_lshl_add_u32 v13, v{vCq}, 3, v13')
    x(f's_mul_i32 s{sT0}, s{sKG}, {16*1088}'); x(f's_add_u32 s{sT0}, s{sT0}, {VBUF[0]}')
    x(f'v_add_u32 v13, s{sT0}, v13')
    x('v_lshlrev_b32 v14, 5, v14')
    x(f'v_add_u32 v{vVrdE}, v13, v14')
    x(f'v_sub_u32 v{vVrdO}, v13, v14')
    x(f's_lshl_b32 s{sVoff}, s{sW}, 13')
    x(f's_add_u32 s{sVoff2}, s{sVoff}, 4096')
    flush(x.items)
    if dbg == 'q':
        d = Asm()
        d(f's_lshl_b32 s{sT0}, s2, 2'); d(f's_add_u32 s{sT0}, s{sT0}, s{sW}'); d(f's_lshl_b32 s{sT0}, s{sT0}, 15')
        d(f'v_lshlrev_b32 v13, 4, v{vLane}')
        for i in range(32):
            d(f'buffer_store_dwordx4 {ar(128+4*i,4)}, v13, s[{sDBG}:{sDBG+3}], s{sT0} offen')
            d(f's_add_u32 s{sT0}, s{sT0}, 1024')
        d('s_waitcnt vmcnt(0)')
        flush(d.items)
        a.label('K2_end'); a('s_endpgm')
        return finish(a)

    def kdma(buf, j, tag):
        return kdma_item(buf, j, vDmaK, tag)
    def vdma(buf, j, tag):
        so = sVoff2 if j >= 4 else sVoff
        return [Ins(f's_add_u32 m0, s{sVdst}, {VBUF[buf] + (4*1088 if j >= 4 else 0) + (j & 3) * 64}'),
                Ins('s_nop 0'),
                TIns(f'buffer_load_dwordx4 v{vDmaV}, s[{sV}:{sV+3}], s{so} offen offset:{(j&3)*1024} {DMAF} lds', tag)]
    def adv(r1, r2):
        return [Ins(f's_add_u32 s{r1}, s{r1}, 32768'), Ins(f's_add_u32 s{r2}, s{r2}, 32768')]
    def k_read(buf, f):
        return [Ins(f'ds_read_b128 {vr(FR(f),4)}, v{vKrd} offset:{KBUF[buf] + (f>>3)*8*1056 + (f&7)*64}')]
    def v_read(buf, dt, f):
        base = vVrdE if (dt & 1) == 0 else vVrdO
        r = FR(f); o = VBUF[buf] - VBUF[0] + dt * 32
        return [Ins(f'ds_read_b64_tr_b16 v[{r}:{r+1}], v{base} offset:{o}'),
                Ins(f'ds_read_b64_tr_b16 v[{r+2}:{r+3}], v{base} offset:{o + 8*1088}')]
    def qk_mf(q, czero=False):
        kt = q >> 5; ds = (q >> 2) & 7; lr = q & 3
        c = ('0' if czero else vr(NEGM(lr), 4)) if ds == 0 else vr(S_(kt, lr), 4)
        return f'{MF} {vr(S_(kt,lr),4)}, {vr(FR(q>>2),4)}, {ar(Q_(lr,ds),4)}, {c}'
    def pv_mf(dt, lr, f, pb):
        o = oreg(dt, lr)
        return f'{MF} {o}, {vr(FR(f),4)}, {vr(P_(pb,lr),4)}, {o}'

    z = Asm()
    z.items += pf.stamp()
    for j in range(8): z.items += vdma(0, j, 'v0')
    z.items += adv(sVoff, sVoff2)
    for f in range(4): z.items += k_read(0, f)
    flush(z.items)
    s = Seg(64)
    for q in range(64): s.mf[q] = qk_mf(q, czero=True)
    for f in range(4, 16):
        for it in k_read(0, f): s.put(4 * f - 13, it)
    zi = [f'v_mov_b32 v{vO+i}, 0' for i in range(128)] + [f'v_accvgpr_write_b32 a{i}, 0' for i in range(128)]
    for i, t in enumerate(zi): s.put(i // 4, t)
    s.post[55].append(Ins('s_waitcnt lgkmcnt(0)'))
    s.post[55].append(('waitvm', 'k1'))
    s.post[55].append(Ins('s_barrier'))
    for j in range(8):
        for it in kdma(0, j, 'k0'): s.post[56 + j].append(it)
    s.post[63] += adv(sKoff, sKoff2)
    flush(s.items())
    i0 = Asm()
    i0('s_nop 7')
    for f in range(4): i0.items += k_read(1, f)
    def rowmax(x, lr, dst):
        s0 = S_(0, lr); s1 = S_(1, lr)
        x(f'v_max3_f32 v{dst}, v{s0}, v{s0+1}, v{s0+2}')
        x(f'v_max3_f32 v{dst}, v{dst}, v{s0+3}, v{s1}')
        x(f'v_max3_f32 v{dst}, v{dst}, v{s1+1}, v{s1+2}')
        x(f'v_max_f32 v{dst}, v{dst}, v{s1+3}')
        allreduce_g4(x, dst, vT2, 'v_max_f32')
    def softmax_plain(x, pb):
        for lr in range(4):
            for kt in range(2):
                sb = S_(kt, lr); e = vPt + 4 * kt
                for i in range(4): x(f'v_exp_f32 v{e+i}, v{sb+i}')
            x('s_nop 0')
            e = vPt
            x(f'v_add_f32 v{vLt+lr}, v{e}, v{e+1}')
            for i in range(2, 8): x(f'v_add_f32 v{vLt+lr}, v{vLt+lr}, v{e+i}')
            for i in range(4): x(f'v_cvt_pk_bf16_f32 v{P_(pb,lr)+i}, v{e+2*i}, v{e+2*i+1}')
    i0(f's_mov_b32 s{sT0}, {f2u(U0):#x}')
    for lr in range(4):
        rowmax(i0, lr, vT0)
        i0(f'v_add_f32 v{vT0}, s{sT0}, v{vT0}')
        for i in range(4): i0(f'v_sub_f32 v{NEGM(lr)+i}, 0, v{vT0}')
        for kt in range(2):
            for i in range(4): i0(f'v_sub_f32 v{S_(kt,lr)+i}, v{S_(kt,lr)+i}, v{vT0}')
        i0(f'v_mov_b32 v{vL+lr}, 0')
    softmax_plain(i0, 0)
    i0(f's_mov_b32 s{sCnt}, 15')
    flush(i0.items)

    rare_sites = []
    def iteration(b, last=False):
        s = Seg(128)
        kb = 1 - b
        for q in range(64): s.mf[q] = qk_mf(q)
        for q in range(64, 128): s.mf[q] = pv_mf((q - 64) >> 2, q & 3, q >> 2, b)
        for lr in range(4): s.put(lr, f'v_add_f32 v{vL+lr}, v{vL+lr}, v{vLt+lr}')
        for f in range(4, 16):
            for it in k_read(kb, f): s.put(4 * f - 13, it)
        s.post[55].append(Ins('s_waitcnt lgkmcnt(0)'))
        s.post[55].append(('waitvm', [f'v{b}'] + (['k0'] if last else [])))
        if 'nobar' not in EXP: s.post[55].append(Ins('s_barrier'))
        for f in (16, 17):
            for it in v_read(b, f - 16, f): s.put(55, it)
        for f in range(18, 32):
            for it in v_read(b, f - 16, f): s.put(4 * f - 13, it)
        s.post[119].append(Ins('s_waitcnt lgkmcnt(0)'))
        if not last:
            s.post[119].append(('waitvm', f'k{b}'))
            if 'nobar' not in EXP: s.post[119].append(Ins('s_barrier'))
            for f in (0, 1):
                for it in k_read(b, f): s.put(119, it)
            for it in k_read(b, 2): s.put(123, it)
            for it in k_read(b, 3): s.put(127, it)
        else:
            s.post[119].append(('waitvm', 'v1'))
            s.post[119].append(Ins('s_barrier'))
            for f in (0, 1):
                for it in v_read(1, f, f): s.put(119, it)
            for it in v_read(1, 2, 2): s.put(123, it)
            for it in v_read(1, 3, 3): s.put(127, it)
        for j in range(8):
            if 'nodma' in EXP: break
            for it in vdma(1 - b, j, f'v{1-b}'): s.put(4 + 6 * j, it, 3)
        for it in adv(sVoff, sVoff2): s.put(53, it, 2)
        if not last:
            for j in range(8):
                if 'nodma' in EXP: break
                for it in kdma(kb, j, f'k{kb}'): s.put(58 + 7 * j, it, 3)
            for it in adv(sKoff, sKoff2): s.put(117, it, 2)
        else:
            for j in range(16):
                for it in wo_dma(j >> 3, j & 7): s.put(57 + 4 * j if 57 + 4*j < 119 else 118, it, 3)
        sm = []
        for kt in range(2):
            for lr in range(4):
                sb = S_(kt, lr); e = vPt + 4 * (lr & 1); lt = vLt + lr; pb = P_(1 - b, lr) + 2 * kt
                early = (34 if kt == 0 else 66)
                sm.append((early, 8, f'v_exp_f32 v{e}, v{sb}'))
                sm.append((early, 8, f'v_exp_f32 v{e+1}, v{sb+1}'))
                sm.append((early, 8, f'v_exp_f32 v{e+2}, v{sb+2}'))
                if kt == 0: sm.append((early, 4, f'v_add_f32 v{lt}, v{e}, v{e+1}'))
                else: sm.append((early, 4, f'v_add_f32 v{lt}, v{lt}, v{e}'))
                sm.append((early, 4, f'v_cvt_pk_bf16_f32 v{pb}, v{e}, v{e+1}'))
                sm.append((early, 8, f'v_exp_f32 v{e+3}, v{sb+3}'))
                if kt == 1: sm.append((early, 4, f'v_add_f32 v{lt}, v{lt}, v{e+1}'))
                sm.append((early, 4, f'v_add_f32 v{lt}, v{lt}, v{e+2}'))
                sm.append((early, 0, None))
                sm.append((early, 4, f'v_add_f32 v{lt}, v{lt}, v{e+3}'))
                sm.append((early, 4, f'v_cvt_pk_bf16_f32 v{pb+1}, v{e+2}, v{e+3}'))
        if 'nosm' in EXP: sm = []
        if 'noexp' in EXP: sm = [x for x in sm if x[2] is None or 'v_exp' not in x[2]]
        q = 0
        for early, c, t in sm:
            q = max(q, early)
            if t is None:
                q += 1; continue
            while q < 127 and s.cost[q] + c > 8: q += 1
            q = min(q, 127)
            s.put(q, t, c)
        iteration.last_q = q
        s.put(127, f'v_max3_f32 v{vT0}, v{vLt}, v{vLt+1}, v{vLt+2}')
        s.put(127, f'v_max_f32 v{vT0}, v{vT0}, v{vLt+3}')
        s.put(127, f'v_cmp_lt_f32 vcc, s{sThr}, v{vT0}')
        site = len(rare_sites); rare_sites.append(1 - b)
        s.put(127, f's_mov_b32 s{sSite}, {site}')
        s.put(127, 's_nop 0')
        if EXP == ['']: s.put(127, f's_cbranch_vccnz K2_rare{1-b}')
        else: s.put(127, f's_cbranch_execz K2_rare{1-b}')
        its = s.items()
        its.append(f'K2_ret{site}:')
        return its
    vDmaWo = vT1
    def wo_dma(tau, jj):
        nb = tau >> 1; hf = tau & 1
        r = [Ins(f's_add_u32 m0, s{sT3}, {WOSLOT[tau & 3] + jj * 1024}'),
             Ins(f's_add_u32 s{sT2}, s{sWoOff}, {(256*hf + 8*jj) * 896 + nb * 128}'),
             TIns(f'buffer_load_dwordx4 v{vDmaWo}, s[{sWO}:{sWO+3}], s{sT2} offen lds', f'wo{tau}')]
        return r
    pre = Asm()
    pre(f'v_lshrrev_b32 v{vT0}, 3, v{vLane}')
    pre(f'v_mul_u32_u24 v{vDmaWo}, 896, v{vT0}')
    pre(f'v_bfe_u32 v{vT0}, v{vLane}, 1, 2')
    pre(f'v_xor_b32 v{vT0}, v{vT0}, v{vG4}')
    pre(f'v_lshl_add_u32 v{vDmaWo}, v{vT0}, 5, v{vDmaWo}')
    pre(f'v_and_b32 v{vT0}, 1, v{vLane}')
    pre(f'v_lshl_add_u32 v{vDmaWo}, v{vT0}, 4, v{vDmaWo}')
    pre(f's_mul_i32 s{sWoOff}, s{sW}, {64*896}')
    pre(f's_lshl_b32 s{sT3}, s{sW}, 13')
    if L2PF:
        pre(f's_lshl_b32 s{sT0}, s{sW}, 6')
        pre(f'v_add_u32 v6, s{sT0}, v{vLane}')
        pre('v_min_u32 v6, 111, v6'); pre('v_lshlrev_b32 v6, 7, v6')
        pre(f's_mul_i32 s{sT0}, s{sRB}, {112*128}')
        pre(f'buffer_load_dword v7, v6, s[{sWO}:{sWO+3}], s{sT0} offen')
    flush(pre.items + pf.stamp() + (pf.stamp(True) if PSEL == 'loop' else []))
    body = ['K2_loop:'] + iteration(0) + iteration(1) + L(f's_sub_u32 s{sCnt}, s{sCnt}, 1\ns_cmp_lg_u32 s{sCnt}, 0\ns_cbranch_scc1 K2_loop')
    a.items.extend(resolve_loop(body, st))
    flush(pf.stamp() + (pf.stamp(True) if PSEL == 'loop' else []))
    flush(iteration(0, last=True))
    s = Seg(64)
    for q in range(64): s.mf[q] = pv_mf(q >> 2, q & 3, q >> 2, 1)
    for lr in range(4): s.put(lr, f'v_add_f32 v{vL+lr}, v{vL+lr}, v{vLt+lr}')
    for f in range(4, 16):
        for it in v_read(1, f, f): s.put(4 * f - 13, it)
    its = s.items()
    e = Asm()
    for lr in range(4): allreduce_g4(e, vL + lr, vT2, 'v_add_f32')
    flush(its + e.items)
    m = Asm()
    m.items += pf.stamp()
    m('s_waitcnt lgkmcnt(0)')
    m('s_barrier')
    m(f'v_lshlrev_b32 v8, 3, v{vLane}')
    m(f's_lshl_b32 s{sT0}, s{sW}, 10'); m(f's_add_u32 s{sT0}, s{sT0}, {STAT}')
    m(f'v_add_u32 v9, s{sT0}, v8')
    m(f's_xor_b32 s{sT1}, s{sW}, 2'); m(f's_lshl_b32 s{sT0}, s{sT1}, 10'); m(f's_add_u32 s{sT0}, s{sT0}, {STAT}')
    m(f'v_add_u32 v10, s{sT0}, v8')
    for xx in range(2):
        m(f'v_mov_b32 v{24+2*xx}, v{NEGM(2+xx)}')
        m(f'v_mov_b32 v{25+2*xx}, v{vL+2+xx}')
        m(f'ds_write_b64 v9, v[{24+2*xx}:{25+2*xx}] offset:{xx*512}')
    m(f'v_lshlrev_b32 v8, 4, v{vLane}')
    m(f's_lshl_b32 s{sT0}, s{sW}, 14'); m(f's_add_u32 s{sT0}, s{sT0}, {XAREA}')
    m(f'v_add_u32 v11, s{sT0}, v8')
    m(f's_lshl_b32 s{sT0}, s{sT1}, 14'); m(f's_add_u32 s{sT0}, s{sT0}, {XAREA}')
    m(f'v_add_u32 v12, s{sT0}, v8')
    RC = 64
    for rnd in range(2):
        for dd in range(8):
            for xx in range(2):
                m(f'ds_write_b128 v11, {ar(OG_(8*rnd+dd, 2+xx),4)} offset:{(dd*2+xx)*1024}')
        m('s_waitcnt lgkmcnt(0)')
        m('s_barrier')
        if rnd == 0:
            for xx in range(2):
                m(f'ds_read_b64 v[{28+2*xx}:{29+2*xx}], v10 offset:{xx*512}')
        for dd in range(8):
            for xx in range(2):
                m(f'ds_read_b128 {vr(RC+(dd*2+xx)*4,4)}, v12 offset:{(dd*2+xx)*1024}')
        if rnd == 0:
            for xx in range(2):
                no, lo_ = NEGM(xx), vL + xx
                nt, lt_ = 28 + 2 * xx, 29 + 2 * xx
                so, sot = 32 + 4 * xx, 34 + 4 * xx
                m(f'v_min_f32 v{vT0}, v{no}, v{nt}')
                m(f'v_sub_f32 v{so}, v{vT0}, v{no}')
                m(f'v_sub_f32 v{sot}, v{vT0}, v{nt}')
                m(f'v_exp_f32 v{so}, v{so}')
                m(f'v_exp_f32 v{sot}, v{sot}')
                m('s_nop 0')
                m(f'v_mul_f32 v{vT0}, v{so}, v{lo_}')
                m(f'v_fmac_f32 v{vT0}, v{sot}, v{lt_}')
                m(f'v_rcp_f32 v{vT0}, v{vT0}')
                m('s_nop 0')
                m(f'v_mul_f32 v{so}, v{so}, v{vT0}')
                m(f'v_mul_f32 v{sot}, v{sot}, v{vT0}')
        for dd in range(8):
            dt = 8 * rnd + dd
            for xx in range(2):
                so, sot = 32 + 4 * xx, 34 + 4 * xx
                r = RC + (dd * 2 + xx) * 4; k = OK_(dt, xx)
                for h2 in range(2):
                    m(f'v_pk_mul_f32 v[{r+2*h2}:{r+2*h2+1}], v[{r+2*h2}:{r+2*h2+1}], v[{sot}:{sot+1}] op_sel_hi:[1,0]')
                for h2 in range(2):
                    m(f'v_pk_fma_f32 v[{k+2*h2}:{k+2*h2+1}], v[{k+2*h2}:{k+2*h2+1}], v[{so}:{so+1}], v[{r+2*h2}:{r+2*h2+1}] op_sel_hi:[1,0,1]')
        m('s_waitcnt lgkmcnt(0)')
        m('s_barrier')
    m(f'v_lshlrev_b32 v8, 4, v{vLane}')
    m(f's_lshl_b32 s{sT0}, s{sA}, 15'); m(f's_lshl_b32 s{sT1}, s{sKG}, 11'); m(f's_add_u32 s{sT0}, s{sT0}, s{sT1}')
    m(f's_add_u32 s{sT0}, s{sT0}, {XAREA}')
    m(f'v_add_u32 v9, s{sT0}, v8')
    for e_ in range(8):
        for xx in range(2):
            t0 = OK_(2 * e_, xx); t1 = OK_(2 * e_ + 1, xx)
            m(f'v_cvt_pk_bf16_f32 v{t0}, v{t0}, v{t0+1}')
            m(f'v_cvt_pk_bf16_f32 v{t0+1}, v{t0+2}, v{t0+3}')
            m(f'v_cvt_pk_bf16_f32 v{t0+2}, v{t1}, v{t1+1}')
            m(f'v_cvt_pk_bf16_f32 v{t0+3}, v{t1+2}, v{t1+3}')
            m(f'ds_write_b128 v9, {vr(t0,4)} offset:{e_*4096 + xx*1024}')
    m('s_waitcnt lgkmcnt(0)')
    m('s_barrier')
    m(f'v_add_u32 v9, {XAREA}, v8')
    for i in range(64):
        m(f'ds_read_b128 {ar(4*i,4)}, v9 offset:{i*1024}')
    m('s_waitcnt lgkmcnt(0)')
    m.items.append(('waitvm', 'wo0'))
    m('s_barrier')
    flush(m.items)
    if dbg == 'o':
        d = Asm()
        d(f's_cmp_lg_u32 s{sW}, 0'); d('s_cbranch_scc1 K2_end')
        d(f's_lshl_b32 s{sT0}, s2, 16')
        for i in range(64):
            d(f'buffer_store_dwordx4 {ar(4*i,4)}, v8, s[{sDBG}:{sDBG+3}], s{sT0} offen')
            d(f's_add_u32 s{sT0}, s{sT0}, 1024')
        d('s_waitcnt vmcnt(0)')
        flush(d.items)
        a.label('K2_end'); a('s_endpgm')
        rare_code(a, rare_sites, rowmax, softmax_plain)
        return finish(a)
    w_ = Asm()
    w_.items += pf.stamp() + (pf.stamp(True) if PSEL == 'wo' else [])
    w_(f'v_and_b32 v9, 1, v{vG4}')
    w_(f'v_lshl_add_u32 v9, v9, 2, v{vR}')
    w_('v_lshrrev_b32 v10, 1, v9')
    w_(f'v_xor_b32 v10, s{sW}, v10')
    w_('v_lshlrev_b32 v10, 5, v10')
    w_('v_lshl_add_u32 v10, v9, 7, v10')
    w_(f'v_lshl_add_u32 v10, v{vCq}, 3, v10')
    w_(f'v_lshrrev_b32 v9, 1, v{vG4}')
    w_('v_lshl_add_u32 v10, v9, 10, v10')
    w_(f'v_add_u32 v11, {WOSLOT[2]}, v10')
    w_(f's_lshl_b32 s{sT0}, s{sW}, 11')
    w_(f'v_add_u32 v12, s{sT0}, v8')
    def wo_read(tau, f):
        base = 10 if (tau & 3) < 2 else 11
        o = (tau & 1) * 32768 + f * 4096
        r = FR(f)
        return [Ins(f'ds_read_b64_tr_b16 v[{r}:{r+1}], v{base} offset:{o}'),
                Ins(f'ds_read_b64_tr_b16 v[{r+2}:{r+3}], v{base} offset:{o + 2048}')]
    for f in range(4): w_.items += wo_read(0, f)
    flush(w_.items)
    WACC = [48, 64]; WT = 80
    def wo_epilogue(nb):
        r = []
        ac = WACC[nb & 1]
        for pp in range(2):
            t = WT + 4 * pp
            for xx in range(2):
                sreg = ac + (2 * pp + xx) * 4
                r.append(Ins(f'v_cvt_pk_bf16_f32 v{t+2*xx}, v{sreg}, v{sreg+1}'))
                r.append(Ins(f'v_cvt_pk_bf16_f32 v{t+2*xx+1}, v{sreg+2}, v{sreg+3}'))
            r.append(TIns(f'buffer_store_dwordx4 {vr(t,4)}, v12, s[{sPART}:{sPART+3}], s{sT1} offen offset:{pp*1024}', 'st'))
        return r
    segs = []
    for tau in range(14):
        nb = tau >> 1; hf = tau & 1
        s = Seg(32)
        ac = WACC[nb & 1]
        for q in range(32):
            f = q >> 2; rs = q & 3; ks = hf * 8 + f
            c = '0' if (hf == 0 and f == 0) else vr(ac + rs * 4, 4)
            s.mf[q] = f'{MF} {vr(ac+rs*4,4)}, {vr(FR(f),4)}, {ar((ks*4+rs)*4,4)}, {c}'
        for f in range(4, 8):
            for it in wo_read(tau, f): s.put(4 * f - 13, it)
        if tau + 1 < 14:
            s.post[23].append(Ins('s_waitcnt lgkmcnt(0)'))
            s.post[23].append(('waitvm', f'wo{tau+1}'))
            s.post[23].append(Ins('s_barrier'))
            for it in wo_read(tau + 1, 0) + wo_read(tau + 1, 1): s.post[23].append(it)
            for it in wo_read(tau + 1, 2): s.put(27, it)
            for it in wo_read(tau + 1, 3): s.put(31, it)
        if hf == 0 and nb > 0:
            s.put(8, f's_mov_b32 s{sT1}, {(nb-1)*8192}')
            for i, it in enumerate(wo_epilogue(nb - 1)): s.put(9 + i, it)
        segs.append(s)
    pos = 1
    for t in range(2, 14):
        if t >= 4: pos = max(pos, 32 * (t - 4) + 25)
        for jj in range(8):
            for it in wo_dma(t, jj): segs[pos // 32].put(pos % 32, it, 3)
            pos += 4
    for s in segs: flush(s.items())
    f_ = Asm()
    f_('s_nop 7')
    f_(f's_mov_b32 s{sT1}, {6*8192}')
    f_.items += wo_epilogue(6)
    flush(f_.items + pf.stamp() + (pf.stamp(True) if PSEL == 'wo' else []))
    if asmlib.PROF:
        a('s_waitcnt vmcnt(0)')
        a.items += pf.stamp(lite=True)
        pf.store(a, 14, sW, 4, 13, 'K2_end')
    a.label('K2_end'); a('s_endpgm')
    rare_code(a, rare_sites, rowmax, softmax_plain)
    return finish(a)

def rare_code(a, sites, rowmax, softmax_plain):
    for pb in range(2):
        x = Asm()
        x.label(f'K2_rare{pb}')
        x('s_nop 7'); x('s_nop 7')
        x(f's_mov_b32 s{sT0}, {f2u(U0):#x}')
        for lr in range(4):
            rowmax(x, lr, vT0)
            x(f'v_add_f32 v{vT0}, s{sT0}, v{vT0}')
            x(f'v_max_f32 v{vT0}, 0, v{vT0}')
            x(f'v_ceil_f32 v{vT0}, v{vT0}')
            for i in range(4): x(f'v_sub_f32 v{NEGM(lr)+i}, v{NEGM(lr)+i}, v{vT0}')
            for kt in range(2):
                for i in range(4): x(f'v_sub_f32 v{S_(kt,lr)+i}, v{S_(kt,lr)+i}, v{vT0}')
            x(f'v_exp_f32 v{vT1 if False else vPt}, -v{vT0}')
            x('s_nop 0')
            f = vPt
            x(f'v_mul_f32 v{vL+lr}, v{vL+lr}, v{f}')
            for dt in range(16):
                if lr < 2:
                    for i in range(4): x(f'v_mul_f32 v{OK_(dt,lr)+i}, v{OK_(dt,lr)+i}, v{f}')
                else:
                    for i in range(4): x(f'v_accvgpr_read_b32 v{vPt+1+i}, a{OG_(dt,lr)+i}')
                    for i in range(4): x(f'v_mul_f32 v{vPt+1+i}, v{vPt+1+i}, v{f}')
                    for i in range(4): x(f'v_accvgpr_write_b32 a{OG_(dt,lr)+i}, v{vPt+1+i}')
        softmax_plain(x, pb)
        x('s_nop 1')
        for i, p in enumerate(sites):
            if p == pb:
                x(f's_cmp_eq_u32 s{sSite}, {i}')
                x(f's_cbranch_scc1 K2_ret{i}')
        x('s_endpgm')
        a.items.extend(x.items)

def finish(a):
    probs = check_hazards(a.ins(), 'k2') + check_waits(a.ins(), 'k2')
    for p in probs[:40]: print(p)
    return kernel_text('k2_attn_kernel', a.text(), vgpr=512, sgpr=102, accum=256), ('k2_attn_kernel', 256, 256, LDS_BYTES)
```

```python
from asmlib import *
import asmlib, os
from k2 import f2u, WS_PART, MF, WS_W1F, WS_W2F
CPF = os.environ.get('CPF', '1') == '1'
EXP = os.environ.get('K3EXP', '').split(',')
WS_H = 0x1000000
WS_X1 = 0x1800000

def lane_consts(p):
    p('v_and_b32 v1, 63, v0')
    p('v_lshrrev_b32 v6, 6, v0')
    p('v_and_b32 v2, 15, v0')
    p('v_lshrrev_b32 v3, 4, v1')

def interleave(chain, extra, every):
    out = []; k = 0; n = 0
    for it in chain:
        out.append(it)
        if isinstance(it, Ins):
            n += 1
            if n % every == 0 and k < len(extra):
                out += extra[k]; k += 1
    for g in extra[k:]: out += g
    return out

def one_wave_code_prefetch(p, name, swave, wave, sbase, vt, lo, hi):
    p(f's_cmp_lg_u32 s{swave}, {wave}'); p(f's_cbranch_scc1 {name}_nocpf')
    p(f's_getpc_b64 s[{sbase}:{sbase+1}]')
    p.items.append(f'{name}_pc:')
    p(f's_sub_u32 s{sbase}, s{sbase}, {name}_pc-{lo}'); p(f's_subb_u32 s{sbase+1}, s{sbase+1}, 0')
    p(f'v_lshlrev_b32 v{vt}, 7, v1'); p(f'v_min_u32 v{vt}, {hi}-{lo}-4, v{vt}')
    p(f'global_load_dword v{vt}, v{vt}, s[{sbase}:{sbase+1}]')
    p.items.append(f'{name}_nocpf:')

def gen_k3():
    a = Asm(); st = State()
    def flush(items): a.items.extend(resolve_linear(items, st))
    sX, sPART, sMOD, sW1, sH, sX1 = 16, 20, 24, 28, 32, 36
    sV, sRBK, sHS, sT0, sT1, sT2, sT3, sMask, sA0, sA1, sAL = 40, 41, 42, 43, 44, 45, 46, 47, 48, 49, 50
    NL = 4
    ABUF = 0; HB = 14 * NL * 2048; STATS = HB + 28672; PARB = STATS + 4608
    GA, XR, AC, SEL, SB, CB, PR = 16, 24, 32, 48, 54, 120, 64
    p = Asm()
    p('s_cmp_ge_u32 s2, 256'); p('s_cbranch_scc1 K3_end')
    pf = Prof(2, 64, 16)
    p.items += pf.stamp()
    p.items += pf.stamp(True)
    p('s_load_dwordx2 s[6:7], s[0:1], 0')
    p('s_load_dwordx2 s[8:9], s[0:1], 96')
    lane_consts(p)
    p(f'v_readfirstlane_b32 s{sV}, v6')
    p(f's_and_b32 s{sRBK}, s2, 7'); p(f's_lshr_b32 s{sT0}, s2, 5'); p(f's_lshl_b32 s{sT0}, s{sT0}, 3'); p(f's_or_b32 s{sRBK}, s{sRBK}, s{sT0}')
    p(f's_lshr_b32 s{sHS}, s2, 3'); p(f's_and_b32 s{sHS}, s{sHS}, 3')
    p(f's_mov_b32 s{sMask}, 0xffff0000')
    p('v_lshlrev_b32 v6, 4, v1')
    p(f's_lshr_b32 s{sT0}, s{sRBK}, 1'); p(f's_mul_i32 s{sT0}, s{sT0}, {8*57344}')
    p(f's_and_b32 s{sT1}, s{sRBK}, 1'); p(f's_lshl_b32 s{sT1}, s{sT1}, 10'); p(f's_add_u32 s{sT0}, s{sT0}, s{sT1}')
    p(f's_lshl_b32 s{sT1}, s{sV}, 12'); p(f's_add_u32 s{sT0}, s{sT0}, s{sT1}')
    p(f'v_add_u32 v7, s{sT0}, v6')
    p(f's_mul_i32 s{sA0}, s{sHS}, 28'); p(f's_lshl_b32 s{sT0}, s{sV}, 1'); p(f's_add_u32 s{sA0}, s{sA0}, s{sT0}')
    p(f's_mul_i32 s{sA0}, s{sA0}, 14336')
    p(f's_add_u32 s{sA1}, s{sA0}, 14336')
    p(f's_mul_i32 s{sAL}, s{sV}, {NL*2048}')
    p('s_waitcnt lgkmcnt(0)')
    srd(p, sMOD, 8, 10752)
    p(f's_add_u32 s4, s8, {WS_PART}'); p('s_addc_u32 s5, s9, 0'); srd(p, sPART, 4, 8 * 1835008)
    p(f's_cmp_ge_u32 s{sV}, 6'); p('s_cbranch_scc1 K3_nopar')
    p(f's_lshl_b32 s{sT0}, s{sV}, 10'); p(f's_add_u32 m0, s{sT0}, {PARB}'); p(f's_add_u32 s{sT0}, s{sT0}, 3584')
    flush(p.items)
    a.items.append(Ins(f'buffer_load_dwordx4 v6, s[{sMOD}:{sMOD+3}], s{sT0} offen lds'))
    a.label('K3_nopar')
    p = Asm()
    p(f's_mov_b32 s{sT0}, 0')
    for g in range(8):
        for t in range(2):
            p(f'buffer_load_dwordx4 {vr(PR+(g*2+t)*4,4)}, v7, s[{sPART}:{sPART+3}], s{sT0} offen offset:{t*2048}')
        if g < 7: p(f's_add_u32 s{sT0}, s{sT0}, 57344')
    srd(p, sX, 6, 1835008)
    p(f's_lshl_b32 s{sT0}, s{sRBK}, 5')
    p(f'v_add_u32 v8, s{sT0}, v2')
    p('v_mul_u32_u24 v8, 896, v8')
    p('v_lshl_add_u32 v8, v3, 3, v8')
    p(f's_lshl_b32 s{sT0}, s{sV}, 6')
    p(f'v_add_u32 v8, s{sT0}, v8')
    p(f's_mov_b32 s{sT1}, 14336')
    for x in range(2):
        for t in range(2):
            so = '0' if x == 0 else f's{sT1}'
            p(f'buffer_load_dwordx2 {vr(XR+(x*2+t)*2,2)}, v8, s[{sX}:{sX+3}], {so} offen offset:{t*32}')
    p('v_mov_b32 v12, 0'); p('v_mov_b32 v13, 0')
    p('v_min_u32 v11, 575, v0'); p('v_lshlrev_b32 v11, 3, v11'); p(f'v_add_u32 v11, {STATS}, v11')
    p('ds_write_b64 v11, v[12:13]')
    p(f's_add_u32 s4, s8, {WS_W1F}'); p('s_addc_u32 s5, s9, 0'); srd(p, sW1, 4, 112 * 14 * 1024)
    p(f's_lshl_b32 s{sT0}, s{sV}, 7'); p(f's_add_u32 s{sT0}, s{sT0}, {PARB}')
    p('v_lshlrev_b32 v9, 4, v3'); p(f'v_add_u32 v9, s{sT0}, v9')
    flush(p.items)
    a.items.append(Ins('s_waitcnt vmcnt(20) lgkmcnt(0)'))
    st.lg = []
    p = Asm()
    p('s_barrier')
    for y in range(2):
        so = sA0 if y == 0 else sA1
        for ks in range(NL):
            if ks == 0:
                p(f's_add_u32 m0, s{sAL}, {ABUF + y*NL*1024}'); p('s_nop 0')
            p.items.append(TIns(f'buffer_load_dwordx4 v6, s[{sW1}:{sW1+3}], s{so} offen offset:{ks*1024} lds', 'al'))
    def par(base, sec):
        for t in range(2):
            p(f'ds_read_b128 {vr(base+4*t,4)}, v9 offset:{(sec-2)*1792 + t*64}')
    par(GA, 2); par(SB, 3)
    if CPF: one_wave_code_prefetch(p, 'K3', sV, 13, 62, 15, 'k3_ffn1_kernel', 'k4_ffn2_kernel')
    p(f's_add_u32 s4, s8, {WS_H}'); p('s_addc_u32 s5, s9, 0'); srd(p, sH, 4, 128 * 56 * 1024)
    p(f's_add_u32 s4, s8, {WS_X1}'); p('s_addc_u32 s5, s9, 0'); srd(p, sX1, 4, 1835008)
    p('v_lshrrev_b32 v10, 2, v2')
    p('v_cmp_eq_u32 vcc, v10, v3')
    p('v_and_b32 v10, 1, v2'); p('v_lshlrev_b32 v10, 4, v10')
    p('v_mov_b32 v11, 0x3f80'); p('v_lshlrev_b32 v11, v10, v11')
    p('v_cndmask_b32 v11, 0, v11, vcc')
    p('v_and_b32 v10, 2, v2'); p('v_cmp_eq_u32 vcc, 0, v10')
    for r in (0, 1, 4, 5): p(f'v_mov_b32 v{SEL+r}, 0')
    p(f'v_cndmask_b32 v{SEL+2}, 0, v11, vcc')
    p(f'v_sub_u32 v{SEL+3}, v11, v{SEL+2}')
    p('v_mov_b32 v7, 1.0')
    p('v_mul_u32_u24 v11, 144, v2'); p(f'v_add_u32 v11, {STATS}, v11')
    p(f's_lshl_b32 s{sT0}, s{sV}, 3'); p(f'v_add_u32 v10, s{sT0}, v11')
    for g in range(8):
        for t in range(2):
            for x in range(2):
                ac = AC + (t * 2 + x) * 4
                sel = SEL + 2 if x == 0 else SEL
                c = '0' if g == 0 else vr(ac, 4)
                p(f'{MF} {vr(ac,4)}, v[{sel}:{sel+3}], {vr(PR+(g*2+t)*4,4)}, {c}')
    p.items += pf.stamp()
    par(CB, 4)
    def a_slot(ks, y): return PR + (((ks - NL) % 7) * 2 + y) * 4
    def a_load(ks, y):
        r = a_slot(ks, y)
        so = sA0 if y == 0 else sA1
        return [Ins(f's_add_u32 s{sT3}, s{so}, {(ks//4)*4096}'),
                Ins(f'buffer_load_dwordx4 {vr(r,4)}, v6, s[{sW1}:{sW1+3}], s{sT3} offen offset:{(ks%4)*1024}')]
    aloads = [a_load(ks, y) for ks in range(NL, NL + 7) for y in range(2)]
    head = p.items
    p = Asm()
    p('s_nop 7')
    for t in range(2):
        for x in range(2):
            o = AC + (t * 2 + x) * 4; xr = XR + (x * 2 + t) * 2
            for d in range(2):
                p(f'v_lshlrev_b32 v12, 16, v{xr+d}')
                p(f'v_and_b32 v13, s{sMask}, v{xr+d}')
                p(f'v_pk_fma_f32 v[{o+2*d}:{o+2*d+1}], v[{o+2*d}:{o+2*d+1}], v[{GA+4*t+2*d}:{GA+4*t+2*d+1}], v[12:13]')
    for x in range(2):
        o0 = AC + x * 4; o1 = AC + (2 + x) * 4
        p(f'v_pk_add_f32 v[16:17], v[{o0}:{o0+1}], v[{o0+2}:{o0+3}]')
        p(f'v_pk_add_f32 v[18:19], v[{o1}:{o1+1}], v[{o1+2}:{o1+3}]')
        p(f'v_pk_mul_f32 v[20:21], v[{o0}:{o0+1}], v[{o0}:{o0+1}]')
        p(f'v_pk_add_f32 v[16:17], v[16:17], v[18:19]')
        for r in (o0 + 2, o1, o1 + 2):
            p(f'v_pk_fma_f32 v[20:21], v[{r}:{r+1}], v[{r}:{r+1}], v[20:21]')
        p(f'v_add_f32 v{12+2*x}, v16, v17')
        p(f'v_add_f32 v{13+2*x}, v20, v21')
    seg1 = interleave(p.items, aloads[:4], 10)
    flush(head + seg1 + L_(f's_cmp_lg_u32 s{sHS}, 0\ns_cbranch_scc1 K3_nox1'))
    p = Asm()
    p(f's_mov_b32 s{sT1}, 14336')
    for t in range(2):
        for x in range(2):
            o = AC + (t * 2 + x) * 4; xr = XR + (x * 2 + t) * 2
            for d in range(2): p(f'v_cvt_pk_bf16_f32 v{xr+d}, v{o+2*d}, v{o+2*d+1}')
            so = '0' if x == 0 else f's{sT1}'
            p(f'buffer_store_dwordx2 {vr(xr,2)}, v8, s[{sX1}:{sX1+3}], {so} offen offset:{t*32}')
    p('s_nop 1')
    a.items.extend(p.items)
    a.label('K3_nox1')
    p = Asm()
    p('s_nop 1')
    for i in range(4):
        p(f'v_mfma_f32_16x16x4_f32 {vr(16+4*i,4)}, v7, v{12+i}, 0')
    p.items += aloads[4] + aloads[5]
    p('s_nop 7')
    for x in range(2):
        p(f'v_mov_b32 v{17+8*x}, v{20+8*x}')
        p(f'ds_write_b64 v10, v[{16+8*x}:{17+8*x}] offset:{x*2304}')
    p('s_waitcnt lgkmcnt(0)')
    p('s_barrier')
    p.items += pf.stamp()
    seg2 = p.items
    p = Asm()
    for x in range(2):
        for hlf in range(2):
            for i in range(4):
                p(f'ds_read_b128 {vr(16+4*i,4)}, v11 offset:{x*2304+hlf*64+i*16}')
            for i in (0, 2, 4, 6): p(f'v_pk_add_f32 v[{16+i}:{17+i}], v[{16+i}:{17+i}], v[{24+i}:{25+i}]')
            for i in (0, 2): p(f'v_pk_add_f32 v[{16+i}:{17+i}], v[{16+i}:{17+i}], v[{20+i}:{21+i}]')
            if hlf == 0: p(f'v_pk_add_f32 v[{12+2*x}:{13+2*x}], v[16:17], v[18:19]')
            else:
                p('v_pk_add_f32 v[16:17], v[16:17], v[18:19]')
                p(f'v_pk_add_f32 v[{12+2*x}:{13+2*x}], v[{12+2*x}:{13+2*x}], v[16:17]')
    for x in range(2):
        s1, s2 = 12 + 2 * x, 13 + 2 * x
        p(f'v_mul_f32 v{s1}, {f2u(1/448):#x}, v{s1}')
        p(f'v_mul_f32 v{s2}, {f2u(1/448):#x}, v{s2}')
        p(f'v_fma_f32 v{s2}, -v{s1}, v{s1}, v{s2}')
        p(f'v_max_f32 v{s2}, 0, v{s2}')
        p(f'v_add_f32 v{s2}, {f2u(1e-5):#x}, v{s2}')
        p(f'v_rsq_f32 v{s2}, v{s2}')
    p(f's_lshl_b32 s{sT0}, s{sV}, 10'); p(f's_add_u32 s{sT0}, s{sT0}, {HB}')
    p(f'v_add_u32 v11, s{sT0}, v6')
    for x in range(2):
        mp = 12 + 2 * x
        o = XR + 4 * x
        for t in range(2):
            src = AC + (t * 2 + x) * 4
            for d in range(2):
                p(f'v_pk_mul_f32 v[16:17], v[{CB+4*t+2*d}:{CB+4*t+2*d+1}], v[{mp}:{mp+1}] op_sel:[0,1] op_sel_hi:[1,1]')
                p(f'v_pk_fma_f32 v[18:19], v[16:17], v[{mp}:{mp+1}], v[{SB+4*t+2*d}:{SB+4*t+2*d+1}] op_sel_hi:[1,0,1] neg_lo:[1,0,0] neg_hi:[1,0,0]')
                p(f'v_pk_fma_f32 v[{src+2*d}:{src+2*d+1}], v[{src+2*d}:{src+2*d+1}], v[16:17], v[18:19]')
                p(f'v_cvt_pk_bf16_f32 v{o+2*t+d}, v{src+2*d}, v{src+2*d+1}')
        p(f'ds_write_b128 v11, {vr(o,4)} offset:{x*14336}')
    seg3 = interleave(p.items, aloads[6:], 10)
    p = Asm()
    p(f'v_add_u32 v11, {HB}, v6')
    p(f'v_add_u32 v10, s{sAL}, v6')
    p('s_waitcnt lgkmcnt(0)')
    p('s_barrier')
    flush(seg2 + seg3 + p.items + pf.stamp())
    def b_rd(ks):
        return [Ins(f'ds_read_b128 {vr(16+((ks&1)*2+x)*4,4)}, v11 offset:{(x*14+ks)*1024}') for x in range(2)]
    def al_rd(ks):
        return [Ins(f'ds_read_b128 {vr(48+((ks&1)*2+y)*4,4)}, v10 offset:{ABUF + (y*NL+ks)*1024}') for y in range(2)]
    p = Asm()
    p.items.append(('waitvm', 'al'))
    p.items += b_rd(0) + al_rd(0)
    for ks in range(14):
        if ks + 1 < 14: p.items += b_rd(ks + 1)
        if ks + 1 < NL: p.items += al_rd(ks + 1)
        for y in range(2):
            for x in range(2):
                ac = AC + (y * 2 + x) * 4
                c = '0' if ks == 0 else vr(ac, 4)
                af = 48 + ((ks & 1) * 2 + y) * 4 if ks < NL else a_slot(ks, y)
                p(f'{MF} {vr(ac,4)}, {vr(af,4)}, {vr(16+((ks&1)*2+x)*4,4)}, {c}')
        if ks >= NL and ks + 7 < 14:
            for y in range(2): p.items += a_load(ks + 7, y)
    p('s_nop 7')
    p(f's_mul_i32 s{sT0}, s{sRBK}, {2*56}'); p(f's_mul_i32 s{sT1}, s{sHS}, 14'); p(f's_add_u32 s{sT0}, s{sT0}, s{sT1}')
    p(f's_add_u32 s{sT0}, s{sT0}, s{sV}'); p(f's_lshl_b32 s{sT0}, s{sT0}, 10')
    p(f's_add_u32 s{sT1}, s{sT0}, {56*1024}')
    for x in range(2):
        o = 16 + 4 * x
        for y in range(2):
            ac = AC + (y * 2 + x) * 4
            for r in range(4): p(f'v_max_f32 v{ac+r}, 0, v{ac+r}')
            p(f'v_cvt_pk_bf16_f32 v{o+2*y}, v{ac}, v{ac+1}')
            p(f'v_cvt_pk_bf16_f32 v{o+2*y+1}, v{ac+2}, v{ac+3}')
        p(f'buffer_store_dwordx4 {vr(o,4)}, v6, s[{sH}:{sH+3}], s{sT0 if x == 0 else sT1} offen')
    flush(p.items + pf.stamp())
    if asmlib.PROF:
        a('s_waitcnt vmcnt(0)')
        a.items += pf.stamp(lite=True)
        a.items += pf.stamp(True)
        pf.store(a, 8, sV, 4, 12, 'K3_end')
    a.label('K3_end'); a('s_endpgm')
    probs = check_hazards(a.ins(), 'k3') + check_waits(a.ins(), 'k3')
    for q in probs[:40]: print(q)
    return kernel_text('k3_ffn1_kernel', a.text(), vgpr=128, sgpr=96, accum=128), ('k3_ffn1_kernel', 256, 896, PARB + 6144)

def L_(text):
    x = Asm(); x(text); return x.items

def gen_k4():
    a = Asm(); st = State()
    def flush(items): a.items.extend(resolve_linear(items, st))
    sH, sW2, sMOD, sX1, sOUT = 16, 20, 24, 28, 32
    sV, sRB, sNB, sT0, sT1, sT2, sT3, sDst, sSrc, sMask = 40, 41, 42, 43, 44, 45, 46, 47, 48, 49
    p = Asm()
    p('s_cmp_ge_u32 s2, 224'); p('s_cbranch_scc1 K4_end')
    pf = Prof(3, 64)
    p.items += pf.stamp()
    p.items += pf.stamp(True)
    p('s_load_dwordx2 s[6:7], s[0:1], 80')
    p('s_load_dwordx2 s[8:9], s[0:1], 96')
    if CPF: code_prefetch(p, 'K4', 512, 62, 14, 15, ['v15'], lo='k4_ffn2_kernel')
    lane_consts(p)
    p(f'v_readfirstlane_b32 s{sV}, v6')
    p(f's_lshr_b32 s{sT0}, s2, 3'); p(f's_mul_i32 s{sT1}, s{sT0}, 37'); p(f's_lshr_b32 s{sT1}, s{sT1}, 8')
    p(f's_mul_i32 s{sT2}, s{sT1}, 7'); p(f's_sub_u32 s{sNB}, s{sT0}, s{sT2}')
    p(f's_and_b32 s{sRB}, s2, 7'); p(f's_lshl_b32 s{sT1}, s{sT1}, 3'); p(f's_add_u32 s{sRB}, s{sRB}, s{sT1}')
    p(f's_mov_b32 s{sMask}, 0xffff0000')
    p('v_lshlrev_b32 v6, 4, v1')
    p(f's_mul_i32 s{sSrc}, s{sNB}, 56'); p(f's_mul_i32 s{sT1}, s{sV}, 7'); p(f's_add_u32 s{sSrc}, s{sSrc}, s{sT1}'); p(f's_lshl_b32 s{sSrc}, s{sSrc}, 12')
    p(f's_mul_i32 s{sT0}, s{sRB}, {4*56}'); p(f's_add_u32 s{sT0}, s{sT0}, s{sT1}'); p(f's_lshl_b32 s{sT0}, s{sT0}, 10')
    p(f'v_add_u32 v7, s{sT0}, v6')
    p('s_waitcnt lgkmcnt(0)')
    p(f's_add_u32 s4, s8, {WS_W2F}'); p('s_addc_u32 s5, s9, 0'); srd(p, sW2, 4, 392 * 4096)
    p(f's_add_u32 s4, s8, {WS_H}'); p('s_addc_u32 s5, s9, 0'); srd(p, sH, 4, 128 * 56 * 1024)
    RING = 96
    def fr(j, i): return RING + ((j % 5) * 8 + i) * 4
    def loads(j):
        r = []
        r.append(Ins(f's_add_u32 s{sT3}, s{sSrc}, {j*4096}'))
        for nt in range(4):
            r.append(Ins(f'buffer_load_dwordx4 {vr(fr(j,nt),4)}, v6, s[{sW2}:{sW2+3}], s{sT3} offen offset:{nt*1024}'))
        for rs in range(4):
            r.append(Ins(f's_mov_b32 s{sT2}, {rs*56*1024 + (j//4)*4096}'))
            r.append(Ins(f'buffer_load_dwordx4 {vr(fr(j,4+rs),4)}, v7, s[{sH}:{sH+3}], s{sT2} offen offset:{(j%4)*1024}'))
        return r
    for j in range(5): p.items += loads(j)
    srd(p, sOUT, 6, 1835008)
    srd(p, sMOD, 8, 10752)
    p(f's_add_u32 s4, s8, {WS_X1}'); p('s_addc_u32 s5, s9, 0'); srd(p, sX1, 4, 1835008)
    p(f's_lshl_b32 s{sT0}, s{sRB}, 6'); p(f's_lshr_b32 s{sT1}, s{sV}, 1'); p(f's_lshl_b32 s{sT1}, s{sT1}, 4'); p(f's_add_u32 s{sT0}, s{sT0}, s{sT1}')
    p(f'v_add_u32 v8, s{sT0}, v2'); p('v_mul_u32_u24 v8, 896, v8')
    p('v_lshl_add_u32 v8, v3, 3, v8')
    p(f's_lshl_b32 s{sT0}, s{sNB}, 7'); p(f's_and_b32 s{sT1}, s{sV}, 1'); p(f's_lshl_b32 s{sT1}, s{sT1}, 6'); p(f's_add_u32 s{sT0}, s{sT0}, s{sT1}')
    p(f'v_add_u32 v8, s{sT0}, v8')
    ACC = 32
    body = Asm()
    for j in range(7):
        for nt in range(4):
            for rs in range(4):
                ac = ACC + (rs * 4 + nt) * 4
                c = '0' if j == 0 else vr(ac, 4)
                body(f'{MF} {vr(ac,4)}, {vr(fr(j,nt),4)}, {vr(fr(j,4+rs),4)}, {c}')
        if j + 5 < 7: body.items += loads(j + 5)
        if j == 2:
            for t in range(2):
                body(f'buffer_load_dwordx2 v[{16+2*t}:{17+2*t}], v8, s[{sX1}:{sX1+3}], 0 offen offset:{t*32}')
            body(f's_lshl_b32 s{sT0}, s{sT0}, 1'); body(f's_add_u32 s{sT0}, s{sT0}, {5*1792}')
            body('v_lshlrev_b32 v9, 4, v3')
            for t in range(2):
                body(f'buffer_load_dwordx4 {vr(20+4*t,4)}, v9, s[{sMOD}:{sMOD+3}], s{sT0} offen offset:{t*64}')
    flush(p.items + pf.stamp() + body.items + pf.stamp())
    p = Asm()
    p(f's_lshl_b32 s{sDst}, s{sV}, 14')
    p(f'v_add_u32 v12, s{sDst}, v6')
    p('s_nop 7')
    for i in range(16): p(f'ds_write_b128 v12, {vr(ACC+4*i,4)} offset:{i*1024}')
    p(f's_lshl_b32 s{sT0}, s{sV}, 11')
    p(f'v_add_u32 v12, s{sT0}, v6')
    p(f'v_add_u32 v13, 65536, v12')
    p('s_waitcnt lgkmcnt(0)')
    p('s_barrier')
    for u in range(8):
        for t in range(2):
            base = 12 if u < 4 else 13
            p(f'ds_read_b128 {vr(ACC+(u*2+t)*4,4)}, v{base} offset:{(u&3)*16384 + t*1024}')
    for step in (4, 2, 1):
        for u in range(step):
            for t in range(2):
                for h in range(2):
                    d = ACC + (u * 2 + t) * 4 + 2 * h; s_ = ACC + ((u + step) * 2 + t) * 4 + 2 * h
                    p(f'v_pk_add_f32 v[{d}:{d+1}], v[{d}:{d+1}], v[{s_}:{s_+1}]')
    for t in range(2):
        o = ACC + 4 * t
        for d in range(2):
            p(f'v_lshlrev_b32 v12, 16, v{16+2*t+d}')
            p(f'v_and_b32 v13, s{sMask}, v{16+2*t+d}')
            p(f'v_pk_fma_f32 v[{o+2*d}:{o+2*d+1}], v[{o+2*d}:{o+2*d+1}], v[{20+4*t+2*d}:{20+4*t+2*d+1}], v[12:13]')
            p(f'v_cvt_pk_bf16_f32 v{16+2*t+d}, v{o+2*d}, v{o+2*d+1}')
        p(f'buffer_store_dwordx2 v[{16+2*t}:{17+2*t}], v8, s[{sOUT}:{sOUT+3}], 0 offen offset:{t*32}')
    flush(p.items + pf.stamp())
    if asmlib.PROF:
        a('s_waitcnt vmcnt(0)')
        a.items += pf.stamp(lite=True)
        a.items += pf.stamp(True)
        pf.store(a, 8, sV, 4, 12, 'K4_end')
    a.label('K4_end'); a('s_endpgm')
    probs = check_hazards(a.ins(), 'k4') + check_waits(a.ins(), 'k4')
    for q in probs[:40]: print(q)
    return kernel_text('k4_ffn2_kernel', a.text(), vgpr=256, sgpr=96, accum=256), ('k4_ffn2_kernel', 224, 512, 131072)
```
